```python
import torch

def _softmax(x, axis=-1):
    return torch.softmax(x, dim=axis)
def _gelu(x):
    return torch.nn.functional.gelu(x, approximate="tanh")
def _silu(x):
    return torch.nn.functional.silu(x)
def _sigmoid(x):
    return torch.sigmoid(x)
def _layernorm(x, axis=-1, eps=1e-5):
    m = x.mean(dim=axis, keepdim=True)
    v = x.var(dim=axis, keepdim=True, unbiased=False)
    return (x - m) / torch.sqrt(v + eps)
def _scatter_add(tgt, idx, src, axis=0):
    return tgt.clone().index_add_(axis, idx, src)
def _segment_sum(src, seg, n):
    out = torch.zeros((n,) + src.shape[1:], dtype=src.dtype)
    return out.index_add_(0, seg, src)
def _pad(x, pw):
    flat = tuple(v for pair in reversed(pw) for v in pair)
    return torch.nn.functional.pad(x, flat)

kernel_name = 'interleave_layers__grouped_kv_mqa__glu_gated_geglu__prompt'

def setup_inputs():

    _w = (lambda a: (lambda t: t.to(torch.bfloat16) if t.is_floating_point() else t)(torch.as_tensor(a)))
    def _A_setup():
        B, S, D, H = 1, 2048, 512, 32
        Dh = D // H
        return {
            "x": _w((lambda *s: torch.randn(*s, dtype=torch.bfloat16) * 0.05)(B, S, D)),
            "wq": _w((lambda *s: torch.randn(*s, dtype=torch.bfloat16) * 0.05)(D, H * Dh)),
            "wk": _w((lambda *s: torch.randn(*s, dtype=torch.bfloat16) * 0.05)(D, Dh)),
            "wv": _w((lambda *s: torch.randn(*s, dtype=torch.bfloat16) * 0.05)(D, Dh)),
            "wo": _w((lambda *s: torch.randn(*s, dtype=torch.bfloat16) * 0.05)(H * Dh, D)),
        }
    _A_in = _A_setup()

    def _B_setup():
        B, S, Dm, Df = 1, 2048, 512, 1376
        return {
            "x": _w((lambda *s: torch.randn(*s, dtype=torch.bfloat16) * 0.05)(B, S, Dm)),
            "w_gate": _w((lambda *s: torch.randn(*s, dtype=torch.bfloat16) * 0.8)(Dm, Df) * (Dm ** -0.5)),
            "w_up": _w((lambda *s: torch.randn(*s, dtype=torch.bfloat16) * 0.8)(Dm, Df) * (Dm ** -0.5)),
            "w_down": _w((lambda *s: torch.randn(*s, dtype=torch.bfloat16) * 0.8)(Df, Dm) * (Df ** -0.5)),
        }
    _B_in = _B_setup()

    return {
        "A_x": _A_in["x"],
        "A_wq": _A_in["wq"],
        "A_wk": _A_in["wk"],
        "A_wv": _A_in["wv"],
        "A_wo": _A_in["wo"],
        "B_x": _B_in["x"],
        "B_w_gate": _B_in["w_gate"],
        "B_w_up": _B_in["w_up"],
        "B_w_down": _B_in["w_down"],
    }

def reference(A_x, A_wq, A_wk, A_wv, A_wo, B_x, B_w_gate, B_w_up, B_w_down):
    def _A_ref(x, wq, wk, wv, wo):
        B, S, D = x.shape
        H = 32
        Dh = D // H
        q = (lambda x, *d: x.permute(*d))((x @ wq).reshape(B, S, H, Dh), 0, 2, 1, 3)
        k = x @ wk
        v = x @ wv
        scores = torch.einsum("bhqd,bkd->bhqk", q, k) * (Dh ** -0.5)
        p = _softmax(scores, axis=-1)
        o = torch.einsum("bhqk,bkd->bhqd", p, v)
        return (lambda x, *d: x.permute(*d))(o, 0, 2, 1, 3).reshape(B, S, H * Dh) @ wo

    def _B_ref(x, w_gate, w_up, w_down):
        g = torch.einsum("bsd,df->bsf", x, w_gate)
        u = torch.einsum("bsd,df->bsf", x, w_up)
        h = _gelu(g) * u
        return torch.einsum("bsf,fd->bsd", h, w_down)

    x = A_x
    x = x + _A_ref(_layernorm(x, axis=-1), A_wq, A_wk, A_wv, A_wo)
    x = x + _B_ref(_layernorm(x, axis=-1), B_w_gate, B_w_up, B_w_down)
    x = x + _A_ref(_layernorm(x, axis=-1), A_wq, A_wk, A_wv, A_wo)
    x = x + _B_ref(_layernorm(x, axis=-1), B_w_gate, B_w_up, B_w_down)
    return x
```

```python
class Asm:
    def __init__(self):
        self.lines = []
        self._lab = 0
    def __call__(self, s):
        for l in s.split("\n"):
            l = l.strip()
            if l:
                self.lines.append("    " + l)
    def label(self, name):
        self.lines.append(name + ":")
    def raw(self, s):
        self.lines.append(s)
    def comment(self, s):
        self.lines.append("    ; " + s)
    def newlabel(self, p="L"):
        self._lab += 1
        return f"{p}_{self._lab}"
    def text(self):
        return "\n".join(self.lines) + "\n"

def vr(b, n=1):
    return f"v{b}" if n == 1 else f"v[{b}:{b+n-1}]"
def ar(b, n=1):
    return f"a{b}" if n == 1 else f"a[{b}:{b+n-1}]"
def sr(b, n=1):
    return f"s{b}" if n == 1 else f"s[{b}:{b+n-1}]"

def srd(a, d, base, size, off=0):
    if off:
        a(f"s_add_u32 s{d}, s{base}, {off:#x}")
        a(f"s_addc_u32 s{d+1}, s{base+1}, 0")
    else:
        a(f"s_mov_b32 s{d}, s{base}")
        a(f"s_mov_b32 s{d+1}, s{base+1}")
    a(f"s_mov_b32 s{d+2}, {size:#x}")
    a(f"s_mov_b32 s{d+3}, 0x00020000")

def kd(name, vgpr, sgpr=96, accum=None):
    if accum is None:
        accum = (vgpr + 3) // 4 * 4
    return f""".amdhsa_kernel {name}
  .amdhsa_next_free_vgpr {vgpr}
  .amdhsa_next_free_sgpr {sgpr}
  .amdhsa_accum_offset {accum}
  .amdhsa_group_segment_fixed_size 0
  .amdhsa_kernarg_size 96
  .amdhsa_user_sgpr_count 2
  .amdhsa_user_sgpr_kernarg_segment_ptr 1
  .amdhsa_system_sgpr_workgroup_id_x 1
.end_amdhsa_kernel
"""
```

```python
from asmlib import *
from layout import *

ATTN_LDS = 131072 + 8 * 1056 + 256
OL = 131072
OSTR = 1056
STX = OL + 8 * OSTR

class VM:
    def __init__(self): self.ops = []
    def issue(self, tag): self.ops.append(tag)
    def wait(self, tag):
        idx = max(i for i, t in enumerate(self.ops) if t == tag)
        return len(self.ops) - 1 - idx

def gen_attn(a):
    for ent, first in (("attn1_kernel", True), ("attn2_kernel", False)):
        a.raw(".p2align 8")
        a.raw(f".globl {ent}")
        a.raw(f".type {ent},@function")
        a.label(ent)
        a("s_cmp_ge_u32 s2, 256")
        a("s_cbranch_scc1 attn_exit")
        a("s_load_dwordx2 s[24:25], s[0:1], 0")
        a("s_load_dwordx2 s[26:27], s[0:1], 32")
        a("s_load_dwordx2 s[32:33], s[0:1], 88")
        a("s_waitcnt lgkmcnt(0)")
        if first:
            srd(a, 8, 24, 2048 * 1024)
        else:
            srd(a, 8, 32, 2048 * 1024, WS_X2)
        a("s_branch attn_body")
    a.label("attn_exit")
    a("s_endpgm")
    a.label("attn_body")
    srd(a, 12, 26, 512 * 1024)
    srd(a, 20, 32, WS_END)
    vm = VM()
    a("""
    s_and_b32 s34, s2, 7
    s_lshr_b32 s35, s2, 3            ; j
    s_lshl_b32 s34, s34, 5
    s_add_u32 s34, s34, s35
    s_lshl_b32 s34, s34, 3
    v_lshrrev_b32 v2, 6, v0
    v_and_b32 v1, 63, v0
    v_readfirstlane_b32 s37, v2
    s_and_b32 s38, s35, 7
    """)
    a("""
    v_and_b32 v4, 7, v1
    v_add_u32 v4, s34, v4
    v_lshlrev_b32 v3, 10, v4
    v_bfe_u32 v5, v1, 3, 2
    v_lshl_add_u32 v3, v5, 5, v3
    v_lshrrev_b32 v5, 5, v1
    v_lshl_add_u32 v3, v5, 4, v3
    s_lshl_b32 s39, s37, 8
    """)
    a(f"buffer_load_dwordx4 v[8:11], v3, s[20:23], s39 offen offset:{WS_Q}");  vm.issue("q")
    a(f"buffer_load_dwordx4 v[12:15], v3, s[20:23], s39 offen offset:{WS_Q + 128}"); vm.issue("q")
    a("""
    v_lshlrev_b32 v6, 4, v1
    s_lshl_b32 s40, s37, 11          ; w*2048
    """)
    for s in range(8):
        a(f"""
        s_add_u32 s41, s38, {s}
        s_and_b32 s41, s41, 7
        s_lshl_b32 s41, s41, 13
        s_add_u32 s41, s41, s40
        s_add_u32 s42, s41, {WS_KF}
        s_add_u32 m0, s40, {s*8192}
        s_add_u32 s43, s41, {WS_VF}
        buffer_load_dwordx4 v6, s[20:23], s42 offen lds
        buffer_load_dwordx4 v6, s[20:23], s42 offen offset:1024 lds
        s_add_u32 m0, s40, {65536 + s*8192}
        s_nop 0
        buffer_load_dwordx4 v6, s[20:23], s43 offen lds
        buffer_load_dwordx4 v6, s[20:23], s43 offen offset:1024 lds
        """)
        for _ in range(4): vm.issue(f"kv{s}")
    a("""
    v_and_b32 v4, 7, v1
    v_add_u32 v4, s34, v4            ; token
    v_lshrrev_b32 v5, 4, v1          ; g
    v_lshlrev_b32 v7, 10, v4
    v_lshl_add_u32 v7, v5, 3, v7     ; token*1024 + g*8
    """)
    for c in range(8):
        a(f"buffer_load_dwordx2 {vr(112+2*c,2)}, v7, s[8:11], s39 offen offset:{32*c}"); vm.issue("res")
    KA, VA, IDX = 105, 106, 104
    a(f"""
    v_mov_b32 v{IDX}, 0xdddddddd
    v_lshlrev_b32 v{KA}, 4, v1
    v_and_b32 v2, 15, v1
    v_lshlrev_b32 v{VA}, 4, v2
    v_lshrrev_b32 v2, 5, v1
    v_lshl_add_u32 v{VA}, v2, 8, v{VA}
    v_add_u32 v{VA}, 0x10000, v{VA}
    v_and_b32 v2, 27, v1
    v_cmp_eq_u32 vcc, 16, v2
    v_mov_b32 v2, 0x3f803f80
    s_mov_b32 s44, 0x0000ffff
    s_mov_b32 s45, 0x0000ffff
    v_cndmask_b32 v24, 0, v2, vcc
    """)
    for r in range(25, 40):
        a(f"v_mov_b32 v{r}, v24")
    for r in range(72, 104):
        a(f"v_mov_b32 v{r}, 0")
    S = [40, 56]
    O = [72, 88]
    Q = [8, 12]
    def kfrag(t): return 16 + 4 * (t & 1)
    def vfrag(t, i): return 24 + 8 * (t & 1) + 4 * i
    def reads(t):
        if t % 8 == 0:
            a(f"s_waitcnt vmcnt({vm.wait(f'kv{t//8}')})")
            a("s_barrier")
        a(f"ds_read_b128 {vr(kfrag(t),4)}, v{KA} offset:{t*1024}")
        a("s_mov_b64 exec, s[44:45]")
        a(f"ds_read_b128 {vr(vfrag(t,0),4)}, v{VA} offset:{t*1024}")
        a(f"ds_read_b128 {vr(vfrag(t,1),4)}, v{VA} offset:{t*1024+512}")
        a("s_mov_b64 exec, -1")
    def qk(i):
        t, u = i >> 1, i & 1
        a(f"v_mfma_f32_32x32x16_bf16 {vr(S[i&1],16)}, {vr(kfrag(t),4)}, {vr(Q[u],4)}, 0")
    def smf(i, half):
        t, u = i >> 1, i & 1
        a(f"v_smfmac_f32_32x32x32_bf16 {vr(O[u],16)}, {vr(vfrag(t,half),4)}, {vr(S[i&1]+8*half,8)}, v{IDX}")
    reads(0)
    a("s_waitcnt lgkmcnt(0)")
    qk(0)
    a("s_nop 11")
    NT = 64
    for i in range(2 * NT):
        t, u = i >> 1, i & 1
        sb = S[i & 1]
        for e in range(16):
            a(f"v_exp_f32 v{sb+e}, v{sb+e}")
            if e == 1 and i > 0:
                smf(i - 1, 1)
            if e == 2 and u == 0 and t + 1 < NT:
                reads(t + 1)
            if e == 4 and i + 1 < 2 * NT:
                if u == 1:
                    a("s_waitcnt lgkmcnt(0)")
                qk(i + 1)
            if e == 9:
                smf(i, 0)
    a("s_nop 1")
    smf(2 * NT - 1, 1)
    a("s_nop 15")
    a(f"""
    v_mov_b32 v2, {f2hex(2.0**-24)}
    v_mov_b32 v3, {f2hex(2.0**40)}
    v_cmp_ge_f32 s[46:47], v{O[0]+8}, v2
    v_cmp_le_f32 s[48:49], v{O[0]+8}, v3
    v_cmp_ge_f32 s[50:51], v{O[1]+8}, v2
    v_cmp_le_f32 s[52:53], v{O[1]+8}, v3
    """)
    a(f"v_max3_f32 v4, |v{O[0]}|, |v{O[0]+1}|, |v{O[0]+2}|")
    regs = [O[0]+3, O[0]+4, O[0]+5, O[0]+6, O[0]+7] + [O[1]+r for r in range(8)] + [O[0]]
    for k in range(0, len(regs), 2):
        a(f"v_max3_f32 v4, v4, |v{regs[k]}|, |v{regs[k+1]}|")
    a(f"""
    v_mov_b32 v5, {f2hex(2.0**120)}
    v_cmp_le_f32 vcc, v4, v5
    s_and_b64 s[46:47], s[46:47], s[48:49]
    s_and_b64 s[50:51], s[50:51], s[52:53]
    s_and_b64 s[46:47], s[46:47], s[50:51]
    s_and_b64 s[46:47], s[46:47], vcc
    s_cmp_eq_u64 s[46:47], -1
    s_cbranch_scc0 attn_fallback
    """)
    a.label("attn_norm")
    a(f"""
    v_rcp_f32 v2, v{O[0]+8}
    v_rcp_f32 v3, v{O[1]+8}
    v_and_b32 v4, 7, v1
    v_mul_u32_u24 v4, {OSTR}, v4
    v_bfe_u32 v5, v1, 3, 2
    v_lshl_add_u32 v4, v5, 5, v4
    v_lshrrev_b32 v5, 5, v1
    v_lshl_add_u32 v4, v5, 3, v4
    v_add_u32 v4, s39, v4
    v_add_u32 v4, {OL}, v4
    """)
    for u in range(2):
        for r in range(8):
            a(f"v_mul_f32 v{O[u]+r}, v{2+u}, v{O[u]+r}")
        for p in range(4):
            a(f"v_cvt_pk_bf16_f32 v{O[u]+p}, v{O[u]+2*p}, v{O[u]+2*p+1}")
        a(f"ds_write_b64 v4, {vr(O[u],2)} offset:{128*u}")
        a(f"ds_write_b64 v4, {vr(O[u]+2,2)} offset:{128*u+16}")
    a("""
    v_and_b32 v8, 8, v1
    v_bfe_u32 v9, v1, 1, 2
    v_add_u32 v8, v8, v9
    v_lshlrev_b32 v10, 10, v8
    v_lshrrev_b32 v5, 4, v1
    v_lshl_add_u32 v10, v5, 5, v10
    v_and_b32 v9, 1, v1
    v_lshl_add_u32 v10, v9, 4, v10
    v_add_u32 v10, s39, v10
    s_lshl_b32 s40, s37, 15
    v_lshrrev_b32 v8, 5, v1
    v_and_b32 v9, 31, v1
    v_lshlrev_b32 v9, 3, v9
    v_lshl_add_u32 v12, v8, 10, v9
    v_add_u32 v12, s40, v12
    v_and_b32 v8, 7, v1
    """)
    a(f"""
    v_mul_u32_u24 v13, {OSTR}, v8
    v_lshl_add_u32 v13, v5, 4, v13
    v_add_u32 v13, {OL}, v13
    s_waitcnt lgkmcnt(0)
    s_barrier
    """)
    def wo_dma(s):
        slot = s & 3
        for ch in range(2):
            for B in range(2):
                for hh in range(2):
                    a(f"s_add_u32 m0, s40, {slot*8192 + ch*4096 + B*2048 + hh*1024}")
                    a(f"s_mov_b32 s41, {(32*s + 16*hh + 4*B)*1024 + ch*128}")
                    a("buffer_load_dwordx4 v10, s[12:15], s41 offen lds"); vm.issue(f"wo{s}")
    for s in range(4):
        wo_dma(s)
    ACC = 128
    for r in range(ACC, ACC + 32):
        a(f"v_mov_b32 v{r}, 0")
    WFR = 40
    OFR = 72
    for s in range(16):
        slot = s & 3
        a(f"s_waitcnt vmcnt({vm.wait(f'wo{s}')})")
        a(f"ds_read_b128 {vr(OFR,4)}, v13 offset:{64*s}")
        for c in range(8):
            for B in range(2):
                a(f"ds_read_b64_tr_b16 {vr(WFR + 4*c + 2*B, 2)}, v12 offset:{slot*8192 + (c>>2)*4096 + B*2048 + (c&3)*256}")
        a("s_waitcnt lgkmcnt(0)")
        if s + 4 < 16:
            wo_dma(s + 4)
        for c in range(8):
            a(f"v_mfma_f32_16x16x32_bf16 {vr(ACC+4*c,4)}, {vr(WFR+4*c,4)}, {vr(OFR,4)}, {vr(ACC+4*c,4)}")
    a("s_nop 7")
    a("v_mov_b32 v2, 0")
    a("v_mov_b32 v3, 0")
    a("v_mov_b32 v14, 0x3f803f80")
    for c in range(8):
        x = 112 + 2 * c
        b = ACC + 4 * c
        a(f"""
        v_lshlrev_b32 v8, 16, v{x}
        v_and_b32 v9, 0xffff0000, v{x}
        v_add_f32 v{b}, v{b}, v8
        v_add_f32 v{b+1}, v{b+1}, v9
        v_lshlrev_b32 v8, 16, v{x+1}
        v_and_b32 v9, 0xffff0000, v{x+1}
        v_add_f32 v{b+2}, v{b+2}, v8
        v_add_f32 v{b+3}, v{b+3}, v9
        v_cvt_pk_bf16_f32 v{x}, v{b}, v{b+1}
        v_cvt_pk_bf16_f32 v{x+1}, v{b+2}, v{b+3}
        v_dot2c_f32_bf16 v2, v{x}, v14
        v_dot2c_f32_bf16 v3, v{x}, v{x}
        v_dot2c_f32_bf16 v2, v{x+1}, v14
        v_dot2c_f32_bf16 v3, v{x+1}, v{x+1}
        """)
    a(f"""
    s_nop 2
    v_mov_b32 v8, v2
    v_mov_b32 v9, v3
    s_nop 1
    v_permlane32_swap_b32 v2, v8
    v_permlane32_swap_b32 v3, v9
    s_nop 1
    v_add_f32 v2, v2, v8
    v_add_f32 v3, v3, v9
    v_mov_b32 v8, v2
    v_mov_b32 v9, v3
    s_nop 1
    v_permlane16_swap_b32 v2, v8
    v_permlane16_swap_b32 v3, v9
    s_nop 1
    v_add_f32 v2, v2, v8
    v_add_f32 v3, v3, v9
    v_and_b32 v8, 7, v1
    v_lshlrev_b32 v8, 5, v8
    v_add_u32 v8, {STX}, v8
    s_lshl_b32 s41, s37, 3
    v_add_u32 v9, s41, v8
    ds_write_b64 v9, v[2:3]
    s_mov_b32 s46, 0x00ff00ff
    s_mov_b32 s47, 0x00ff00ff
    s_mov_b64 exec, s[46:47]
    s_add_u32 s41, s39, {WS_X1}
    """)
    for c in range(8):
        a(f"buffer_store_dwordx2 {vr(112+2*c,2)}, v7, s[20:23], s41 offen offset:{32*c}")
    a(f"""
    s_mov_b64 exec, -1
    s_waitcnt lgkmcnt(0)
    s_barrier
    ds_read_b128 v[40:43], v8
    ds_read_b128 v[44:47], v8 offset:16
    """)
    a(f"""
    v_and_b32 v4, 7, v1
    v_add_u32 v4, s34, v4
    v_lshrrev_b32 v9, 5, v4
    v_lshlrev_b32 v9, 15, v9
    v_and_b32 v4, 31, v4
    v_lshl_add_u32 v9, v4, 4, v9
    v_lshrrev_b32 v4, 1, v5
    v_lshl_add_u32 v9, v4, 9, v9
    v_and_b32 v4, 1, v5
    v_lshl_add_u32 v9, v4, 3, v9
    s_lshl_b32 s41, s37, 13
    s_add_u32 s41, s41, {WS_XN}
    s_add_u32 s42, s41, 4096
    s_waitcnt lgkmcnt(0)
    v_add_f32 v2, v40, v42
    v_add_f32 v3, v41, v43
    v_add_f32 v2, v2, v44
    v_add_f32 v3, v3, v45
    v_add_f32 v2, v2, v46
    v_add_f32 v3, v3, v47
    v_mul_f32 v2, 0x3b000000, v2
    v_mul_f32 v3, 0x3b000000, v3
    v_fma_f32 v3, -v2, v2, v3
    v_max_f32 v3, 0, v3
    v_add_f32 v3, 0x3727c5ac, v3
    v_rsq_f32 v3, v3
    s_nop 0
    v_mul_f32 v2, v2, v3
    v_sub_f32 v2, 0, v2              ; -mean*rstd
    s_mov_b64 exec, s[46:47]
    """)
    for c in range(8):
        x = 112 + 2 * c
        b = ACC + 4 * c
        a(f"""
        v_lshlrev_b32 v{b}, 16, v{x}
        v_and_b32 v{b+1}, 0xffff0000, v{x}
        v_lshlrev_b32 v{b+2}, 16, v{x+1}
        v_and_b32 v{b+3}, 0xffff0000, v{x+1}
        v_fma_f32 v{b}, v{b}, v3, v2
        v_fma_f32 v{b+1}, v{b+1}, v3, v2
        v_fma_f32 v{b+2}, v{b+2}, v3, v2
        v_fma_f32 v{b+3}, v{b+3}, v3, v2
        v_cvt_pk_bf16_f32 v{b}, v{b}, v{b+1}
        v_cvt_pk_bf16_f32 v{b+1}, v{b+2}, v{b+3}
        buffer_store_dwordx2 {vr(b,2)}, v9, s[20:23], {'s41' if c < 4 else 's42'} offen offset:{1024*(c&3)}
        """)
    a("s_endpgm")

    a.label("attn_fallback")
    CM = 144
    for u in range(2):
        l1, l2 = a.newlabel("attn_fb"), a.newlabel("attn_fb")
        a(f"""
        v_mov_b32 v2, 0xff7fffff
        v_mov_b32 v3, v{KA}
        s_mov_b32 s46, 64
        """)
        a.label(l1)
        a(f"""
        ds_read_b128 v[16:19], v3
        v_add_u32 v3, 1024, v3
        s_waitcnt lgkmcnt(0)
        v_mfma_f32_32x32x16_bf16 v[40:55], v[16:19], {vr(Q[u],4)}, 0
        s_nop 15
        """)
        for e in range(0, 16, 2):
            a(f"v_max3_f32 v2, v2, v{40+e}, v{41+e}")
        a(f"""
        s_sub_u32 s46, s46, 1
        s_cmp_lg_u32 s46, 0
        s_cbranch_scc1 {l1}
        v_mov_b32 v3, v2
        s_nop 1
        v_permlane32_swap_b32 v2, v3
        s_nop 1
        v_max_f32 v2, v2, v3
        v_sub_f32 v2, 0, v2
        """)
        for r in range(16):
            a(f"v_mov_b32 v{CM+r}, v2")
            a(f"v_mov_b32 v{O[u]+r}, 0")
        a(f"""
        v_mov_b32 v3, v{KA}
        v_mov_b32 v4, v{VA}
        s_mov_b32 s46, 64
        """)
        a.label(l2)
        a(f"""
        ds_read_b128 v[16:19], v3
        s_mov_b64 exec, s[44:45]
        ds_read_b128 v[24:27], v4
        ds_read_b128 v[28:31], v4 offset:512
        s_mov_b64 exec, -1
        v_add_u32 v3, 1024, v3
        v_add_u32 v4, 1024, v4
        s_waitcnt lgkmcnt(0)
        v_mfma_f32_32x32x16_bf16 v[40:55], v[16:19], {vr(Q[u],4)}, {vr(CM,16)}
        s_nop 15
        """)
        for e in range(16):
            a(f"v_exp_f32 v{40+e}, v{40+e}")
        a(f"""
        s_nop 1
        v_smfmac_f32_32x32x32_bf16 {vr(O[u],16)}, v[24:27], v[40:47], v{IDX}
        v_smfmac_f32_32x32x32_bf16 {vr(O[u],16)}, v[28:31], v[48:55], v{IDX}
        s_sub_u32 s46, s46, 1
        s_cmp_lg_u32 s46, 0
        s_cbranch_scc1 {l2}
        s_nop 15
        """)
    a("s_branch attn_norm")
    return [("attn1_kernel", 168), ("attn2_kernel", 168)]
```

```python
from asmlib import *
from layout import *
from k_attn import VM

DOWN_LDS = 131072
def gen_down(a):
    for ent, first in (("down1_kernel", True), ("down2_kernel", False)):
        a.raw(".p2align 8")
        a.raw(f".globl {ent}")
        a.raw(f".type {ent},@function")
        a.label(ent)
        a("s_cmp_ge_u32 s2, 256")
        a("s_cbranch_scc1 down_exit")
        a("s_load_dwordx4 s[24:27], s[0:1], 64")
        a("s_load_dwordx2 s[32:33], s[0:1], 88")
        a("s_waitcnt lgkmcnt(0)")
        if first:
            srd(a, 8, 32, 2048 * 1024, WS_X2)
        else:
            srd(a, 8, 26, 2048 * 1024)
        a("s_branch down_body")
    a.label("down_exit")
    a("s_endpgm")
    a.label("down_body")
    srd(a, 12, 24, 1376 * 1024)
    srd(a, 20, 32, WS_END)
    a("""
    s_and_b32 s34, s2, 7
    s_lshr_b32 s35, s2, 3
    s_lshr_b32 s36, s35, 3
    s_lshl_b32 s34, s34, 2
    s_add_u32 s34, s34, s36
    s_and_b32 s35, s35, 7
    v_lshrrev_b32 v2, 6, v0
    v_and_b32 v1, 63, v0
    v_readfirstlane_b32 s37, v2
    """)
    a("""
    v_bfe_u32 v3, v1, 4, 1
    v_lshlrev_b32 v3, 2, v3
    v_bfe_u32 v4, v1, 1, 2
    v_add_u32 v3, v3, v4
    v_lshlrev_b32 v3, 10, v3
    v_lshrrev_b32 v4, 5, v1
    v_lshl_add_u32 v3, v4, 6, v3
    v_bfe_u32 v4, v1, 3, 1
    v_lshl_add_u32 v3, v4, 5, v3
    v_and_b32 v4, 1, v1
    v_lshl_add_u32 v3, v4, 4, v3
    s_lshl_b32 s39, s35, 7
    v_add_u32 v3, s39, v3
    v_lshlrev_b32 v6, 4, v1
    """)
    a(f"""
    s_lshl_b32 s40, s34, 1
    s_mul_i32 s40, s40, {86*1024}
    s_add_u32 s40, s40, {WS_H}
    s_lshl_b32 s41, s37, 10
    s_add_u32 s40, s40, s41
    s_lshl_b32 s42, s37, 14
    s_lshl_b32 s43, s37, 15
    """)
    vm = VM()
    HR = 128
    NS = 22
    LA = 15
    def loads(i):
        slot = i & 15
        a(f"s_add_u32 s44, s40, {i*4096}")
        a(f"s_add_u32 s45, s44, {86*1024}")
        a(f"s_add_u32 m0, s43, {slot*2048}")
        a(f"s_add_u32 s46, s42, {i*65536}")
        a(f"buffer_load_dwordx4 v3, s[12:15], s46 offen lds"); vm.issue(f"s{i}")
        a(f"s_add_u32 m0, s43, {slot*2048+1024}")
        a(f"s_add_u32 s46, s46, 8192")
        a(f"buffer_load_dwordx4 v3, s[12:15], s46 offen lds"); vm.issue(f"s{i}")
        a(f"buffer_load_dwordx4 {vr(HR+8*slot,4)}, v6, s[20:23], s44 offen"); vm.issue(f"s{i}")
        a(f"buffer_load_dwordx4 {vr(HR+8*slot+4,4)}, v6, s[20:23], s45 offen"); vm.issue(f"s{i}")
    for i in range(LA):
        loads(i)
    a("""
    v_lshlrev_b32 v8, 3, v1
    v_add_u32 v8, s43, v8
    """)
    ACC = 64
    for r in range(ACC, ACC + 64):
        a(f"v_mov_b32 v{r}, 0")
    WF = 16
    def reads(i):
        slot = i & 15
        f = WF + 8 * (i & 1)
        a(f"s_waitcnt vmcnt({vm.wait(f's{i}')})")
        for ct in range(2):
            for B in range(2):
                a(f"ds_read_b64_tr_b16 {vr(f+4*ct+2*B,2)}, v8 offset:{slot*2048 + B*1024 + ct*512}")
    reads(0)
    for i in range(NS):
        slot = i & 15
        f = WF + 8 * (i & 1)
        if i + 1 < NS:
            reads(i + 1)
            a("s_waitcnt lgkmcnt(4)")
        else:
            a("s_waitcnt lgkmcnt(0)")
            a("s_cmp_ge_u32 s37, 2")
            a("s_cbranch_scc1 down_skip")
        for tt in range(2):
            for ct in range(2):
                d = ACC + 16 * (2 * tt + ct)
                a(f"v_mfma_f32_32x32x16_bf16 {vr(d,16)}, {vr(f+4*ct,4)}, {vr(HR+8*slot+4*tt,4)}, {vr(d,16)}")
        if i + LA < NS:
            loads(i + LA)
        if i == NS - LA:
            a(f"""
            s_lshl_b32 s44, s34, 6
            s_lshr_b32 s45, s37, 1
            s_lshl_b32 s45, s45, 5
            s_add_u32 s44, s44, s45
            v_and_b32 v9, 31, v1
            v_add_u32 v9, s44, v9
            v_lshlrev_b32 v9, 10, v9
            v_lshrrev_b32 v10, 5, v1
            v_lshl_add_u32 v9, v10, 3, v9
            s_and_b32 s45, s37, 1
            s_lshl_b32 s45, s45, 6
            s_add_u32 s47, s45, s39
            s_add_u32 s48, s47, {WS_X1}
            """)
            for q in range(4):
                a(f"buffer_load_dwordx2 {vr(32+2*q,2)}, v9, s[20:23], s48 offen offset:{16*q}"); vm.issue("res")
    a.label("down_skip")
    a("s_nop 15")
    a("v_add_u32 v10, s43, v6")
    for t in range(4):
        for q in range(4):
            a(f"ds_write_b128 v10, {vr(ACC+16*t+4*q,4)} offset:{t*4096 + q*1024}")
    a("""
    s_lshl_b32 s44, s37, 12
    v_add_u32 v10, s44, v6
    v_add_u32 v11, 0x10000, v10
    s_waitcnt lgkmcnt(0)
    s_barrier
    """)
    for w in range(4):
        for q in range(4):
            a(f"ds_read_b128 {vr(ACC+16*w+4*q,4)}, v{10 + (w>>1)} offset:{(w&1)*32768 + q*1024}")
    a("s_waitcnt vmcnt(0) lgkmcnt(0)")
    for r in range(16):
        a(f"v_add_f32 v{ACC+r}, v{ACC+r}, v{ACC+16+r}")
        a(f"v_add_f32 v{ACC+32+r}, v{ACC+32+r}, v{ACC+48+r}")
    for q in range(4):
        x = 32 + 2 * q
        b = ACC + 4 * q
        a(f"""
        v_lshlrev_b32 v12, 16, v{x}
        v_and_b32 v13, 0xffff0000, v{x}
        v_lshlrev_b32 v14, 16, v{x+1}
        v_and_b32 v15, 0xffff0000, v{x+1}
        v_add_f32 v{b}, v{b}, v{b+32}
        v_add_f32 v{b+1}, v{b+1}, v{b+33}
        v_add_f32 v{b+2}, v{b+2}, v{b+34}
        v_add_f32 v{b+3}, v{b+3}, v{b+35}
        v_add_f32 v{b}, v{b}, v12
        v_add_f32 v{b+1}, v{b+1}, v13
        v_add_f32 v{b+2}, v{b+2}, v14
        v_add_f32 v{b+3}, v{b+3}, v15
        v_cvt_pk_bf16_f32 v{b}, v{b}, v{b+1}
        v_cvt_pk_bf16_f32 v{b+1}, v{b+2}, v{b+3}
        buffer_store_dwordx2 {vr(b,2)}, v9, s[8:11], s47 offen offset:{16*q}
        """)
    a("s_endpgm")
    return [("down1_kernel", 256), ("down2_kernel", 256)]
```

```python
from asmlib import *
from layout import *
from k_attn import VM
import math

GU_LDS = 163840
STG = 40960
K1 = -2.0 * math.sqrt(2.0 / math.pi) * math.log2(math.e)
K2 = K1 * 0.044715

def gen_gu(a):
    a.raw(".p2align 8")
    a.raw(".globl gu_kernel")
    a.raw(".type gu_kernel,@function")
    a.label("gu_kernel")
    a("""
    s_cmp_ge_u32 s2, 256
    s_cbranch_scc1 gu_exit
    s_and_b32 s34, s2, 7
    s_lshr_b32 s35, s2, 3
    s_lshr_b32 s36, s35, 4
    s_lshl_b32 s34, s34, 1
    s_add_u32 s34, s34, s36
    s_and_b32 s35, s35, 15           ; cbk
    s_cmp_eq_u32 s35, 15
    s_cbranch_scc1 gu_exit
    s_load_dwordx4 s[24:27], s[0:1], 48
    s_load_dwordx2 s[32:33], s[0:1], 88
    v_lshrrev_b32 v2, 6, v0
    v_and_b32 v1, 63, v0
    v_readfirstlane_b32 s37, v2
    s_add_u32 s38, s34, s35
    s_and_b32 s38, s38, 7
    """)
    a("""
    v_bfe_u32 v3, v1, 1, 4
    v_xor_b32 v4, 4, v3
    v_mul_u32_u24 v3, 2752, v3
    v_mul_u32_u24 v4, 2752, v4
    v_lshrrev_b32 v5, 5, v1
    v_lshlrev_b32 v5, 5, v5
    v_and_b32 v6, 1, v1
    v_lshl_add_u32 v5, v6, 4, v5
    s_mul_i32 s39, s35, 192
    v_add_u32 v5, s39, v5
    v_add_u32 v3, v3, v5
    v_add_u32 v4, v4, v5
    v_lshlrev_b32 v6, 4, v1
    s_waitcnt lgkmcnt(0)
    """)
    srd(a, 8, 24, 512 * 2752)
    srd(a, 12, 26, 512 * 2752)
    srd(a, 20, 32, WS_END)
    a(f"""
    s_lshl_b32 s40, s34, 2
    s_add_u32 s40, s40, s37
    s_lshl_b32 s40, s40, 15
    s_add_u32 s40, s40, {WS_XN}
    s_lshl_b32 s41, s37, 12
    s_mul_i32 s42, s37, {16*2752}
    s_lshl_b32 s43, s37, 10
    """)
    vm = VM()
    def dma(st):
        slot = st & 3
        a(f"""
        s_add_u32 s44, s38, {st}
        s_and_b32 s44, s44, 7
        s_lshl_b32 s45, s44, 12
        s_add_u32 s45, s45, s40
        s_add_u32 m0, s41, {slot*STG}
        s_mul_i32 s46, s44, {64*2752}
        """)
        for ks in range(4):
            a(f"buffer_load_dwordx4 v6, s[20:23], s45 offen offset:{1024*ks} lds"); vm.issue(f"st{st}")
        a("s_add_u32 s46, s46, s42")
        for p in range(3):
            for mat in range(2):
                a(f"s_add_u32 m0, s43, {slot*STG + 16384 + mat*12288 + p*4096}")
                a(f"s_add_u32 s47, s46, {64*p}")
                a(f"buffer_load_dwordx4 v{3+mat}, s[{8+4*mat}:{11+4*mat}], s47 offen lds"); vm.issue(f"st{st}")
    for st in range(3):
        dma(st)
    a("""
    s_and_b32 s44, s37, 1
    s_lshl_b32 s44, s44, 13
    v_add_u32 v8, s44, v6            ; X base
    v_bfe_u32 v9, v1, 4, 1           ; isup
    v_mul_u32_u24 v10, 12288, v9
    v_lshrrev_b32 v11, 5, v1
    v_lshl_add_u32 v10, v11, 8, v10
    v_and_b32 v11, 15, v1
    v_lshl_add_u32 v10, v11, 3, v10
    v_add_u32 v10, 16384, v10
    v_lshl_add_u32 v11, v9, 7, v10   ; B=0 base
    v_xor_b32 v9, 1, v9
    v_lshl_add_u32 v10, v9, 7, v10   ; B=1 base
    s_lshr_b32 s54, s37, 1
    """)
    a("""
    s_lshl_b32 s45, s54, 13          ; wu*8192
    s_mul_i32 s46, s54, 512
    s_add_u32 s46, s46, 4096
    """)
    for slot in range(4):
        b = 12 + 5 * slot
        a(f"""
        v_add_u32 v{b}, {slot*STG}, v8
        s_add_u32 s47, s45, {slot*STG}
        v_add_u32 v{b+1}, s47, v11
        v_add_u32 v{b+2}, s47, v10
        s_add_u32 s47, s46, {slot*STG}
        v_add_u32 v{b+3}, s47, v11
        v_add_u32 v{b+4}, s47, v10
        """)
    ACC = 80
    for r in range(ACC, ACC + 96):
        a(f"v_mov_b32 v{r}, 0")
    FR = 32
    def reads(k):
        st, ks = k >> 2, k & 3
        b = 12 + 5 * (st & 3)
        f = FR + 20 * (k & 1)
        for tt in range(2):
            a(f"ds_read_b128 {vr(f+4*tt,4)}, v{b} offset:{tt*4096 + ks*1024}")
        for i in range(3):
            for B in range(2):
                if i < 2:
                    a(f"ds_read_b64_tr_b16 {vr(f+8+4*i+2*B,2)}, v{b+1+B} offset:{ks*1024 + i*512}")
                else:
                    a(f"ds_read_b64_tr_b16 {vr(f+8+4*i+2*B,2)}, v{b+3+B} offset:{ks*1024}")
    def stage_sync(st):
        a(f"s_waitcnt vmcnt({vm.wait(f'st{st}')})")
        a("s_barrier")
    stage_sync(0)
    reads(0)
    for k in range(32):
        st, ks = k >> 2, k & 3
        f = FR + 20 * (k & 1)
        if k + 1 < 32:
            if ks == 3:
                a("s_waitcnt lgkmcnt(0)")
                stage_sync(st + 1)
                reads(k + 1)
                if st + 4 < 8 + 0:
                    pass
            else:
                reads(k + 1)
                a("s_waitcnt lgkmcnt(8)")
        else:
            a("s_waitcnt lgkmcnt(0)")
        n = 0
        for i in range(3):
            for tt in range(2):
                d = ACC + 16 * (2 * i + tt)
                a(f"v_mfma_f32_32x32x16_bf16 {vr(d,16)}, {vr(f+8+4*i,4)}, {vr(f+4*tt,4)}, {vr(d,16)}")
                n += 1
                if n == 1 and ks == 0 and st + 3 < 8:
                    dma(st + 3)
    a("s_nop 15")
    a(f"""
    s_mov_b32 s48, {f2hex(K1)}
    s_mov_b32 s49, {f2hex(K2)}
    v_mov_b32 v2, s48
    s_mul_i32 s45, s35, 6
    s_lshl_b32 s46, s54, 2
    s_add_u32 s50, s45, s46
    s_add_u32 s51, s50, 1
    s_add_u32 s52, s45, s54
    s_add_u32 s52, s52, 2
    s_lshl_b32 s46, s34, 2
    s_and_b32 s47, s37, 1
    s_lshl_b32 s47, s47, 1
    s_add_u32 s46, s46, s47
    s_mul_i32 s46, s46, {86*1024}
    s_add_u32 s46, s46, {WS_H}
    """)
    for i in range(3):
        skip = a.newlabel("gu_skip")
        a(f"s_cmp_ge_u32 s{50+i}, 86")
        a(f"s_cbranch_scc1 {skip}")
        a(f"s_lshl_b32 s47, s{50+i}, 10")
        a(f"s_add_u32 s47, s47, s46")
        a(f"s_add_u32 s53, s47, {86*1024}")
        for tt in range(2):
            d = ACC + 16 * (2 * i + tt)
            T = 32
            for r in range(8):
                a(f"v_mul_f32 v{T+r}, v{d+r}, v{d+r}")
            for r in range(8):
                a(f"v_fma_f32 v{T+r}, v{T+r}, s49, v2")
            for r in range(8):
                a(f"v_mul_f32 v{T+r}, v{T+r}, v{d+r}")
            for r in range(8):
                a(f"v_exp_f32 v{T+r}, v{T+r}")
            for r in range(8):
                a(f"v_mul_f32 v{d+r}, v{d+r}, v{d+8+r}")
            for r in range(8):
                a(f"v_add_f32 v{T+r}, 1.0, v{T+r}")
            for r in range(8):
                a(f"v_rcp_f32 v{T+r}, v{T+r}")
            a("s_nop 0")
            for r in range(8):
                a(f"v_mul_f32 v{d+r}, v{d+r}, v{T+r}")
            for p in range(4):
                a(f"v_cvt_pk_bf16_f32 v{d+p}, v{d+2*p}, v{d+2*p+1}")
            a(f"buffer_store_dwordx4 {vr(d,4)}, v6, s[20:23], {'s47' if tt == 0 else 's53'} offen")
        a.label(skip)
    a.label("gu_exit")
    a("s_endpgm")
    return [("gu_kernel", 176)]
```

```python
from asmlib import *
from layout import *

def gen_qkv(a):
    for ent, first in (("qkv1_kernel", True), ("qkv2_kernel", False)):
        a.raw(".p2align 8")
        a.raw(f".globl {ent}")
        a.raw(f".type {ent},@function")
        a.label(ent)
        a("s_cmp_ge_u32 s2, 256")
        a("s_cbranch_scc1 qkv_exit")
        a("s_load_dwordx4 s[24:27], s[0:1], 0")
        a("s_load_dwordx4 s[28:31], s[0:1], 16")
        a("s_load_dwordx2 s[32:33], s[0:1], 88")
        a("s_waitcnt lgkmcnt(0)")
        if first:
            srd(a, 8, 24, 2048 * 1024)
        else:
            srd(a, 8, 32, 2048 * 1024, WS_X2)
        a("s_branch qkv_body")
    a.label("qkv_exit")
    a("s_endpgm")
    a.label("qkv_body")
    srd(a, 12, 26, 512 * 1024)
    srd(a, 20, 32, WS_QKV_END)
    a("""
    s_and_b32 s34, s2, 7
    s_lshr_b32 s35, s2, 3
    s_lshr_b32 s36, s35, 3
    s_lshl_b32 s34, s34, 2
    s_add_u32 s34, s34, s36          ; rb
    s_and_b32 s35, s35, 7            ; cb
    s_cmp_lt_u32 s35, 4
    s_cselect_b32 s16, s28, s30
    s_cselect_b32 s17, s29, s31
    s_mov_b32 s18, 0x4000
    s_mov_b32 s19, 0x00020000
    v_lshrrev_b32 v2, 6, v0
    v_and_b32 v1, 63, v0
    v_readfirstlane_b32 s37, v2
    s_add_u32 s38, s34, s35
    s_and_b32 s38, s38, 3
    """)
    a("""
    v_and_b32 v4, 15, v1
    v_lshrrev_b32 v5, 4, v1          ; g
    s_lshl_b32 s39, s34, 6
    s_lshl_b32 s40, s37, 4
    s_add_u32 s39, s39, s40
    v_add_u32 v6, s39, v4            ; token
    v_lshlrev_b32 v3, 10, v6
    v_lshl_add_u32 v3, v5, 4, v3
    """)
    a("""
    v_and_b32 v8, 8, v1
    v_bfe_u32 v9, v1, 1, 2
    v_add_u32 v8, v8, v9
    v_lshlrev_b32 v7, 10, v8
    v_lshl_add_u32 v7, v5, 5, v7
    v_and_b32 v9, 1, v1
    v_lshl_add_u32 v7, v9, 4, v7
    s_lshl_b32 s40, s35, 7
    s_lshl_b32 s41, s37, 15
    s_add_u32 s40, s40, s41
    v_add_u32 v7, s40, v7
    """)
    a("""
    v_bfe_u32 v8, v1, 3, 2
    v_lshlrev_b32 v8, 3, v8
    v_lshrrev_b32 v11, 5, v1
    v_lshl_add_u32 v8, v11, 2, v8
    v_bfe_u32 v11, v1, 1, 2
    v_add_u32 v8, v8, v11
    v_lshlrev_b32 v10, 5, v8
    v_lshl_add_u32 v10, v9, 4, v10
    s_lshl_b32 s40, s37, 10
    v_add_u32 v10, s40, v10
    s_lshl_b32 s41, s37, 12
    s_add_u32 s42, s40, 65536
    """)
    XB = 64
    for q in range(4):
        a(f"""
        s_add_u32 s43, s38, {q}
        s_and_b32 s43, s43, 3            ; q'
        s_lshl_b32 s44, s43, 17
        s_lshl_b32 s45, s43, 8
        s_lshl_b32 s46, s43, 12
        """)
        for B in range(2):
            for hh in range(2):
                a(f"s_add_u32 m0, s41, {q*16384 + B*2048 + hh*1024}")
                a(f"s_add_u32 s47, s44, {(16*hh + 4*B)*1024}")
                a("buffer_load_dwordx4 v7, s[12:15], s47 offen lds")
        a(f"s_add_u32 m0, s42, {q*4096}")
        a("s_nop 0")
        a("buffer_load_dwordx4 v10, s[16:19], s46 offen lds")
        for s in range(4):
            r = XB + (4*q + s) * 4
            a(f"buffer_load_dwordx4 {vr(r,4)}, v3, s[8:11], s45 offen offset:{64*s}")
    a("""
    v_lshrrev_b32 v8, 5, v1
    v_and_b32 v9, 31, v1
    v_lshlrev_b32 v9, 3, v9
    v_lshl_add_u32 v12, v8, 10, v9   ; W: (l>>5)*1024 + (l&31)*8
    v_lshlrev_b32 v13, 3, v1
    v_add_u32 v13, 0x10000, v13      ; KV-W: 65536 + 8*l
    s_lshl_b32 s40, s37, 8
    v_add_u32 v14, s40, v12
    """)
    for r in range(16, 44):
        a(f"v_mov_b32 v{r}, 0")
    for r in range(44, 48):
        a(f"v_mov_b32 v{r}, 0x3f803f80")
    a("v_mov_b32 v48, 0")
    a("v_mov_b32 v49, 0")
    WF = 128
    def reads(s):
        b = WF + (s & 1) * 24
        for c in range(4):
            for B in range(2):
                a(f"ds_read_b64_tr_b16 {vr(b + c*4 + B*2, 2)}, v12 offset:{s*4096 + B*2048 + c*256}")
        for B in range(2):
            a(f"ds_read_b64_tr_b16 {vr(b + 16 + B*2, 2)}, v14 offset:{s*4096 + B*2048}")
        for B in range(2):
            a(f"ds_read_b64_tr_b16 {vr(b + 20 + B*2, 2)}, v13 offset:{s*1024 + B*512}")
    for q in range(4):
        a(f"s_waitcnt vmcnt({27 - 9*q})")
        a("s_barrier")
        reads(4*q)
        for s in range(4*q, 4*q + 4):
            b = WF + (s & 1) * 24
            x = XB + s * 4
            if s % 4 != 3:
                reads(s + 1)
                a("s_waitcnt lgkmcnt(12)")
            else:
                a("s_waitcnt lgkmcnt(0)")
            for c in range(4):
                a(f"v_mfma_f32_16x16x32_bf16 {vr(16+4*c,4)}, {vr(b+4*c,4)}, {vr(x,4)}, {vr(16+4*c,4)}")
                a(f"v_dot2c_f32_bf16 v48, v{x+c}, v44")
                a(f"v_dot2c_f32_bf16 v49, v{x+c}, v{x+c}")
            a(f"v_mfma_f32_16x16x32_bf16 v[32:35], {vr(b+16,4)}, v[44:47], v[32:35]")
            a(f"v_mfma_f32_16x16x32_bf16 v[36:39], {vr(b+20,4)}, {vr(x,4)}, v[36:39]")
            a(f"v_mfma_f32_16x16x32_bf16 v[40:43], {vr(b+20,4)}, v[44:47], v[40:43]")
    CSX = 81920
    a(f"""
    s_nop 7
    v_lshlrev_b32 v8, 4, v5
    s_lshl_b32 s40, s37, 6
    v_add_u32 v9, s40, v8
    v_add_u32 v9, {CSX}, v9          ; CSX + w*64 + g*16
    v_add_u32 v8, {CSX}, v8
    ds_write_b128 v9, v[32:35]
    v_mov_b32 v50, v48
    v_mov_b32 v51, v49
    s_nop 1
    v_permlane32_swap_b32 v48, v50
    v_permlane32_swap_b32 v49, v51
    s_nop 1
    v_add_f32 v48, v48, v50
    v_add_f32 v49, v49, v51
    v_mov_b32 v50, v48
    v_mov_b32 v51, v49
    s_nop 1
    v_permlane16_swap_b32 v48, v50
    v_permlane16_swap_b32 v49, v51
    s_nop 1
    v_add_f32 v48, v48, v50
    v_add_f32 v49, v49, v51
    v_mul_f32 v48, 0x3b000000, v48
    v_mul_f32 v49, 0x3b000000, v49   ; E[x^2]
    v_fma_f32 v49, -v48, v48, v49    ; var
    v_max_f32 v49, 0, v49
    v_add_f32 v49, 0x3727c5ac, v49   ; + 1e-5
    v_rsq_f32 v49, v49               ; rstd
    s_waitcnt lgkmcnt(0)
    s_barrier
    ds_read_b128 v[128:131], v8
    ds_read_b128 v[132:135], v8 offset:64
    ds_read_b128 v[136:139], v8 offset:128
    ds_read_b128 v[140:143], v8 offset:192
    v_mul_f32 v50, {QSCALE_HEX}, v49
    """)
    for r in range(4):
        a(f"v_fma_f32 v{36+r}, -v48, v{40+r}, v{36+r}")
    for r in range(4):
        a(f"v_mul_f32 v{36+r}, v49, v{36+r}")
    a("v_cvt_pk_bf16_f32 v36, v36, v37")
    a("v_cvt_pk_bf16_f32 v37, v38, v39")
    a("""
    v_lshlrev_b32 v9, 10, v6
    v_lshl_add_u32 v9, v5, 3, v9
    s_lshl_b32 s40, s35, 7
    s_waitcnt lgkmcnt(0)
    """)
    for c in range(4):
        for r in range(4):
            a(f"v_fma_f32 v{16+4*c+r}, -v48, v{128+4*c+r}, v{16+4*c+r}")
        for r in range(4):
            a(f"v_mul_f32 v{16+4*c+r}, v50, v{16+4*c+r}")
        a(f"v_cvt_pk_bf16_f32 v{16+4*c}, v{16+4*c}, v{17+4*c}")
        a(f"v_cvt_pk_bf16_f32 v{17+4*c}, v{18+4*c}, v{19+4*c}")
        a(f"buffer_store_dwordx2 {vr(16+4*c,2)}, v9, s[20:23], s40 offen offset:{WS_Q + 32*c}")
    a(f"""
    s_and_b32 s40, s35, 3
    s_cmp_lg_u32 s40, s37
    s_cbranch_scc1 qkv_exit
    s_cmp_lt_u32 s35, 4
    s_cbranch_scc0 qkv_vstore
    """)
    a(f"""
    v_lshrrev_b32 v8, 5, v6
    v_lshlrev_b32 v8, 10, v8
    v_and_b32 v9, 31, v6
    v_lshl_add_u32 v8, v9, 4, v8
    v_lshrrev_b32 v9, 1, v5
    v_lshl_add_u32 v8, v9, 9, v8
    v_and_b32 v9, 1, v5
    v_lshl_add_u32 v8, v9, 3, v8
    s_mov_b32 s40, {WS_KF}
    buffer_store_dwordx2 v[36:37], v8, s[20:23], s40 offen
    s_endpgm
    """)
    a.label("qkv_vstore")
    a(f"""
    v_lshrrev_b32 v8, 3, v6
    v_lshlrev_b32 v8, 8, v8
    v_and_b32 v9, 7, v6
    v_lshl_add_u32 v8, v9, 1, v8
    v_lshl_add_u32 v8, v5, 6, v8
    s_mov_b32 s40, {WS_VF}
    buffer_store_short v36, v8, s[20:23], s40 offen
    buffer_store_short_d16_hi v36, v8, s[20:23], s40 offen offset:16
    buffer_store_short v37, v8, s[20:23], s40 offen offset:32
    buffer_store_short_d16_hi v37, v8, s[20:23], s40 offen offset:48
    s_endpgm
    """)
    return [("qkv1_kernel", 176), ("qkv2_kernel", 176)]
QKV_LDS = 82432
```

```python
import struct, math
WS_Q   = 0x000000
WS_KF  = 0x200000
WS_VF  = 0x210000
WS_QKV_END = 0x220000
WS_X1  = 0x300000
WS_XN  = 0x500000
WS_H   = 0x700000
WS_X2  = 0xD00000
WS_END = 0xF00000
def f2hex(x):
    return "0x%08x" % struct.unpack("<I", struct.pack("<f", x))[0]
QSCALE_HEX = f2hex(0.25 * math.log2(math.e))
```

```python
import sys
from asmlib import *
from layout import *
from k_qkv import gen_qkv, QKV_LDS
from k_attn import gen_attn, ATTN_LDS
from k_gu import gen_gu, GU_LDS
from k_down import gen_down, DOWN_LDS

HDR = open("interleave_layers__grouped_kv_mqa__glu_gated_geglu__prompt.s.ref").read().split("; Override")[0]
def main(out):
    a = Asm()
    launches = [("qkv1_kernel", QKV_LDS), ("attn1_kernel", ATTN_LDS), ("gu_kernel", GU_LDS), ("down1_kernel", DOWN_LDS),
                ("qkv2_kernel", QKV_LDS), ("attn2_kernel", ATTN_LDS), ("gu_kernel", GU_LDS), ("down2_kernel", DOWN_LDS)]
    s = HDR
    for k, lds in launches:
        s += f"; @launch kernel={k} grid=(256,1,1) block=(256,1,1) lds={lds}\n"
    s += '.amdgcn_target "amdgcn-amd-amdhsa--gfx950"\n.text\n'
    ks = []
    ks += gen_qkv(a)
    ks += gen_attn(a)
    ks += gen_gu(a)
    ks += gen_down(a)
    s += a.text()
    s += '.section .rodata,"a"\n'
    for k, v in ks:
        s += ".p2align 6\n" + kd(k, v)
    open(out, "w").write(s)
main(sys.argv[1] if len(sys.argv) > 1 else "interleave_layers__grouped_kv_mqa__glu_gated_geglu__prompt.s")
```

```python
class Asm:
    def __init__(self):
        self.lines = []
        self._lab = 0
    def __call__(self, s):
        for l in s.split("\n"):
            l = l.strip()
            if l:
                self.lines.append("    " + l)
    def label(self, name):
        self.lines.append(name + ":")
    def raw(self, s):
        self.lines.append(s)
    def comment(self, s):
        self.lines.append("    ; " + s)
    def newlabel(self, p="L"):
        self._lab += 1
        return f"{p}_{self._lab}"
    stamps_on = False
    stamp_op = 's_memrealtime'
    def stamp(self, i):
        if self.stamps_on:
            self(f"{self.stamp_op} s[{64+2*i}:{65+2*i}]")
    def stamp_flush(self, kidx, n, wave_sgpr="s37", ws_srd=20):
        if not self.stamps_on:
            return
        self.stamp(n - 1)
        self("s_waitcnt lgkmcnt(0)")
        self("s_mov_b64 exec, 1")
        self(f"s_lshl_b32 s62, s2, 2")
        self(f"s_add_u32 s62, s62, {wave_sgpr}")
        self(f"s_lshl_b32 s62, s62, 6")
        self(f"s_add_u32 s62, s62, {0x1000000 + kidx * 0x20000}")
        self(f"s_mov_b32 s{ws_srd+2}, 0x2000000")
        self("v_mov_b32 v1, 0")
        for i in range(n):
            self(f"v_mov_b32 v0, s{64+2*i}")
            self(f"buffer_store_dword v0, v1, s[{ws_srd}:{ws_srd+3}], s62 offen offset:{4*i}")
    def text(self):
        return "\n".join(self.lines) + "\n"

def vr(b, n=1):
    return f"v{b}" if n == 1 else f"v[{b}:{b+n-1}]"
def ar(b, n=1):
    return f"a{b}" if n == 1 else f"a[{b}:{b+n-1}]"
def sr(b, n=1):
    return f"s{b}" if n == 1 else f"s[{b}:{b+n-1}]"

def srd(a, d, base, size, off=0):
    if off:
        a(f"s_add_u32 s{d}, s{base}, {off:#x}")
        a(f"s_addc_u32 s{d+1}, s{base+1}, 0")
    else:
        a(f"s_mov_b32 s{d}, s{base}")
        a(f"s_mov_b32 s{d+1}, s{base+1}")
    a(f"s_mov_b32 s{d+2}, {size:#x}")
    a(f"s_mov_b32 s{d+3}, 0x00020000")

def kd(name, vgpr, sgpr=96, accum=None):
    if accum is None:
        accum = (vgpr + 3) // 4 * 4
    return f""".amdhsa_kernel {name}
  .amdhsa_next_free_vgpr {vgpr}
  .amdhsa_next_free_sgpr {sgpr}
  .amdhsa_accum_offset {accum}
  .amdhsa_group_segment_fixed_size 0
  .amdhsa_kernarg_size 96
  .amdhsa_user_sgpr_count 2
  .amdhsa_user_sgpr_kernarg_segment_ptr 1
  .amdhsa_system_sgpr_workgroup_id_x 1
.end_amdhsa_kernel
"""
```

```python
from asmlib import *
from layout import *

TS = 2080
OL = 64 * TS
OSTR = 1088
SPARE = OL + 8 * OSTR
YL = 114688
YSTR = 2064
ATTN_LDS = 163840
STAGES = [4, 4, 8, 8, 8, 8, 8, 8, 8]

def gen_attn(a):
    for ent, first in (("attn1_kernel", True), ("attn2_kernel", False)):
        a.raw(".p2align 8")
        a.raw(f".globl {ent}")
        a.raw(f".type {ent},@function")
        a.label(ent)
        a("s_cmp_ge_u32 s2, 256")
        a("s_cbranch_scc1 attn_exit")
        a("s_load_dwordx2 s[32:33], s[0:1], 88")
        a("s_load_dwordx2 s[24:25], s[0:1], 0")
        a("s_load_dwordx4 s[28:31], s[0:1], 48")
        a("s_waitcnt lgkmcnt(0)")
        if first:
            srd(a, 8, 24, 2048 * 1024)
        else:
            srd(a, 8, 32, 2048 * 1024, WS_X2)
        a("s_branch attn_body")
    a.label("attn_exit")
    a("s_endpgm")
    a.label("attn_body")
    a.stamp(0)
    srd(a, 20, 32, WS_END)
    vm = VM()
    a("""
    s_and_b32 s34, s2, 7
    s_lshr_b32 s35, s2, 3            ; j
    s_lshl_b32 s34, s34, 5
    s_add_u32 s34, s34, s35
    s_lshl_b32 s34, s34, 3
    v_lshrrev_b32 v2, 6, v0
    v_and_b32 v1, 63, v0
    v_readfirstlane_b32 s37, v2
    s_and_b32 s38, s35, 7
    s_lshl_b32 s38, s38, 14
    """)
    WV = 108
    a(f"""
    v_and_b32 v4, 7, v1
    v_add_u32 v4, s34, v4
    v_lshlrev_b32 v3, 10, v4
    v_bfe_u32 v5, v1, 3, 2
    v_lshl_add_u32 v3, v5, 5, v3
    v_lshrrev_b32 v5, 5, v1
    v_lshl_add_u32 v3, v5, 4, v3
    s_lshl_b32 s39, s37, 8
    v_lshlrev_b32 v{WV}, 4, v1
    """)
    a(f"buffer_load_dwordx4 v[8:11], v3, s[20:23], s39 offen offset:{WS_Q}");  vm.issue("q")
    a(f"buffer_load_dwordx4 v[12:15], v3, s[20:23], s39 offen offset:{WS_Q + 128}"); vm.issue("q")
    a(f"""
    s_lshl_b32 s40, s37, 11
    s_add_u32 s40, s40, s38          ; (w + rot)*2048
    s_mul_i32 s41, s37, {TS}
    """)
    stage_of = []
    for si, n in enumerate(STAGES):
        stage_of += [si] * n
    stage_start = {}
    for t, si in enumerate(stage_of):
        stage_start.setdefault(si, t)
    def kv_setup(i):
        return [f"s_add_u32 s42, s40, {i*8192}", f"s_and_b32 s42, s42, 0x1ffff", f"s_add_u32 s42, s42, {WS_KV}", f"s_add_u32 m0, s41, {4*i*TS}"]
    def kv_ops(i):
        tag = f"kv{stage_of[4*i]}"
        return [(f"buffer_load_dwordx4 v{WV}, s[20:23], s42 offen lds", tag),
                (f"buffer_load_dwordx4 v{WV}, s[20:23], s42 offen offset:1024 lds", tag)]
    NPRO = 4
    for i in range(NPRO):
        st = kv_setup(i)
        a(st[3]); a(st[0]); a(st[1]); a(st[2])
        for op, tag in kv_ops(i):
            a(op); vm.issue(tag)
    KA, VA0, VA1, IDX, PF = 105, 106, 107, 104, 109
    a(f"""
    v_mov_b32 v{IDX}, 0xdddddddd
    v_mov_b32 v{KA}, v{WV}
    v_and_b32 v2, 15, v1
    v_lshlrev_b32 v{VA0}, 4, v2
    v_lshrrev_b32 v2, 5, v1
    v_lshl_add_u32 v{VA0}, v2, 8, v{VA0}
    v_add_u32 v{VA0}, 1024, v{VA0}
    v_add_u32 v{VA1}, 512, v{VA0}
    v_and_b32 v2, 27, v1
    v_cmp_eq_u32 vcc, 16, v2
    v_mov_b32 v2, 2064
    v_mov_b32 v4, 2048
    v_and_b32 v5, 16, v1
    v_cndmask_b32 v2, v2, v4, vcc
    v_cmp_eq_u32 vcc, 0, v5
    v_mov_b32 v40, 0x3f803f80
    v_mov_b32 v41, 0x3f803f80
    v_cndmask_b32 v{VA0}, v2, v{VA0}, vcc
    v_cndmask_b32 v{VA1}, v2, v{VA1}, vcc
    v_mov_b32 v42, 0
    v_mov_b32 v43, 0
    v_lshrrev_b32 v4, 2, v0
    v_mul_u32_u24 v4, {TS}, v4
    v_and_b32 v5, 3, v0
    v_lshl_add_u32 v4, v5, 3, v4
    v_cmp_gt_u32 vcc, 2, v5
    s_nop 1
    v_cndmask_b32 v40, v42, v40, vcc
    v_cndmask_b32 v41, v42, v41, vcc
    ds_write_b64 v4, v[40:41] offset:2048
    v_lshrrev_b32 v4, 5, v0
    v_add_u32 v4, s34, v4
    v_and_b32 v5, 31, v0
    v_lshlrev_b32 v7, 10, v4
    v_lshl_add_u32 v7, v5, 4, v7
    v_lshlrev_b32 v{PF}, 7, v1
    s_lshl_b32 s43, s37, 17
    s_add_u32 s43, s43, {WS_WOF}
    s_lshl_b32 s48, s37, 11          ; w*2048
    """)
    srd(a, 12, 28, 512 * 2752)
    srd(a, 16, 30, 512 * 2752)
    a(f"""
    s_lshl_b32 s49, s35, 14
    s_and_b32 s50, s37, 1
    s_lshl_b32 s50, s50, 13
    s_add_u32 s49, s49, s50
    s_add_u32 s49, s49, {WS_WOF}
    buffer_load_dword v110, v{PF}, s[20:23], s49 offen
    s_lshl_b32 s49, s35, 15
    s_lshl_b32 s50, s37, 13
    s_add_u32 s49, s49, s50
    s_add_u32 s50, s49, 0x100000
    """)
    vm.issue("pf0")
    for r in range(72, 104):
        a(f"v_mov_b32 v{r}, 0")
    S = [40, 56]
    O = [72, 88]
    Q = [8, 12]
    def kfrag(t): return 16 + 4 * (t & 1)
    def vfrag(t, i): return 24 + 8 * (t & 1) + 4 * i
    SEG = 31
    def toff(t): return (t % SEG) * TS
    def rdK(t): return f"ds_read_b128 {vr(kfrag(t),4)}, v{KA} offset:{toff(t)}"
    def rdV(t, i): return f"ds_read_b128 {vr(vfrag(t,i),4)}, v{VA0+i} offset:{toff(t)}"
    def qk(i):
        t, u = i >> 1, i & 1
        a(f"v_mfma_f32_32x32x16_bf16 {vr(S[i&1],16)}, {vr(kfrag(t),4)}, {vr(Q[u],4)}, 0")
    def smf(i, half):
        t, u = i >> 1, i & 1
        a(f"v_smfmac_f32_32x32x32_bf16 {vr(O[u],16)}, {vr(vfrag(t,half),4)}, {vr(S[i&1]+8*half,8)}, v{IDX}")

    NT = 64
    pairs = {}
    for i in range(NPRO, 16):
        pairs[4 * (i - NPRO)] = (kv_setup(i), kv_ops(i))
    def ldsfrag_addr(p):
        if p < 2: return SPARE + p * 8192
        return (p - 2) * 8192
    def ldsfrag_earliest(p):
        if p < 2: return 0
        need = (p - 1) * 8192
        for si in sorted(stage_start):
            T = stage_start[si]
            if T * TS >= need: return T
        raise ValueError
    assert SPARE + 2 * 8192 <= ATTN_LDS
    t = 6
    for p in range(16):
        t = max(t, ldsfrag_earliest(p))
        while t in pairs: t += 1
        assert t < NT - 1, (p, t)
        pairs[t] = ([f"s_add_u32 s42, s43, {(96 + 2*p)*1024}", f"s_add_u32 m0, s48, {ldsfrag_addr(p)}"],
                    [(f"buffer_load_dwordx4 v{WV}, s[20:23], s42 offen lds", "wo"),
                     (f"buffer_load_dwordx4 v{WV}, s[20:23], s42 offen offset:1024 lds", "wo")])
        t += 3 if t < 50 else 1
    singles = []
    def fragreg(f):
        return ar(4 * f, 4) if f < 64 else vr(128 + 4 * (f - 64), 4)
    for f in range(96):
        setup = f"s_add_u32 s44, s43, {f*1024}" if f % 4 == 0 else None
        singles.append((setup, f"buffer_load_dwordx4 {fragreg(f)}, v{WV}, s[20:23], s44 offen offset:{(f%4)*1024}", "wo"))
    for c in range(2):
        singles.append((None, f"buffer_load_dwordx4 {vr(112+4*c,4)}, v7, s[8:11], 0 offen offset:{512*c}", "wo"))
    lates = []
    for m in range(2):
        lates.append((None, f"buffer_load_dword v110, v{PF}, s[{12+4*m}:{15+4*m}], s49 offen", "pf"))
        lates.append((None, f"buffer_load_dword v110, v{PF}, s[{12+4*m}:{15+4*m}], s50 offen", "pf"))
    sq = list(singles)
    cur = [0]
    def emit_single():
        t = cur[0]
        if t < 3: return
        q = sq
        if not sq:
            if t < 59: return
            q = lates
        if not q: return
        if q is sq and (len(singles) - len(sq)) > (t - 2) * len(singles) / 54.0: return
        setup, op, tag = q.pop(0)
        if setup: a(setup)
        a(op); vm.issue(tag)

    a.stamp(1)
    a(f"s_waitcnt vmcnt({vm.wait('kv0')}) lgkmcnt(0)")
    a("s_barrier")
    a.stamp(2)
    a(rdK(0)); a(rdV(0, 0)); a(rdV(0, 1))
    a("s_waitcnt lgkmcnt(0)")
    qk(0)
    a("s_nop 11")
    for i in range(2 * NT):
        t, u = i >> 1, i & 1
        sb = S[i & 1]
        if i == 64: a.stamp(3)
        nxt = t + 1 < NT
        pr = pairs.get(t)
        cur[0] = t
        for e in range(16):
            a(f"v_exp_f32 v{sb+e}, v{sb+e}")
            if e == 0 and u == 0 and nxt and (t + 1) % SEG == 0:
                for r in (KA, VA0, VA1):
                    a(f"v_add_u32 v{r}, {SEG*TS}, v{r}")
            if e == 1:
                if i > 0: smf(i - 1, 1)
                if u == 0:
                    if nxt and stage_start[stage_of[t + 1]] == t + 1:
                        a(f"s_waitcnt vmcnt({vm.wait(f'kv{stage_of[t+1]}')})")
                        a("s_barrier")
                    elif pr:
                        a(pr[0][0])
                    if nxt: a(rdK(t + 1))
                else:
                    if nxt: a("s_waitcnt lgkmcnt(2)")
                    if pr:
                        a(pr[1][0][0]); vm.issue(pr[1][0][1])
                    else:
                        emit_single()
            if e == 4:
                if i + 1 < 2 * NT: qk(i + 1)
                if u == 0:
                    if nxt: a(rdV(t + 1, 0))
                else:
                    if pr:
                        a(pr[1][1][0]); vm.issue(pr[1][1][1])
                    else:
                        emit_single()
            if e == 9:
                smf(i, 0)
                if u == 0:
                    if pr:
                        done = 0 if (nxt and stage_start[stage_of[t + 1]] == t + 1) else 1
                        for x in pr[0][done:]: a(x)
                    if nxt: a(rdV(t + 1, 1))
                else:
                    if nxt: a("s_waitcnt lgkmcnt(0)")
                    emit_single()
    assert not sq and not lates, (len(sq), len(lates))
    a("s_nop 1")
    smf(2 * NT - 1, 1)
    code_pf(a, 80, PF, 110, tmp=84); vm.issue("pf")
    a("s_nop 7")
    a.stamp(4)
    a(f"""
    v_mov_b32 v2, {f2hex(2.0**-24)}
    v_mov_b32 v3, {f2hex(2.0**40)}
    v_cmp_ge_f32 s[46:47], v{O[0]+8}, v2
    v_cmp_le_f32 s[60:61], v{O[0]+8}, v3
    v_cmp_ge_f32 s[50:51], v{O[1]+8}, v2
    v_cmp_le_f32 s[52:53], v{O[1]+8}, v3
    """)
    a(f"v_max3_f32 v4, |v{O[0]}|, |v{O[0]+1}|, |v{O[0]+2}|")
    regs = [O[0]+3, O[0]+4, O[0]+5, O[0]+6, O[0]+7] + [O[1]+r for r in range(8)] + [O[0]]
    for k in range(0, len(regs), 2):
        a(f"v_max3_f32 v4, v4, |v{regs[k]}|, |v{regs[k+1]}|")
    a(f"""
    v_mov_b32 v5, {f2hex(2.0**120)}
    v_cmp_le_f32 vcc, v4, v5
    s_and_b64 s[46:47], s[46:47], s[60:61]
    s_and_b64 s[50:51], s[50:51], s[52:53]
    s_and_b64 s[46:47], s[46:47], s[50:51]
    s_and_b64 s[46:47], s[46:47], vcc
    s_cmp_eq_u64 s[46:47], -1
    s_cbranch_scc0 attn_fallback
    """)
    a.label("attn_norm")
    a(f"""
    v_rcp_f32 v2, v{O[0]+8}
    v_rcp_f32 v3, v{O[1]+8}
    v_and_b32 v4, 7, v1
    v_mul_u32_u24 v6, {OSTR}, v4
    v_bfe_u32 v5, v1, 3, 2
    v_lshl_add_u32 v4, v5, 5, v6
    v_lshrrev_b32 v5, 5, v1
    v_lshl_add_u32 v4, v5, 3, v4
    v_add_u32 v4, s39, v4
    v_add_u32 v4, {OL}, v4
    """)
    for u in range(2):
        for r in range(8):
            a(f"v_mul_f32 v{O[u]+r}, v{2+u}, v{O[u]+r}")
        for p in range(4):
            a(f"v_cvt_pk_bf16_f32 v{O[u]+p}, v{O[u]+2*p}, v{O[u]+2*p+1}")
        a(f"ds_write_b64 v4, {vr(O[u],2)} offset:{128*u}")
        a(f"ds_write_b64 v4, {vr(O[u]+2,2)} offset:{128*u+16}")
    ACC = 40
    a(f"""
    v_lshrrev_b32 v5, 4, v1          ; g
    v_lshl_add_u32 v6, v5, 5, v6
    v_bfe_u32 v2, v1, 3, 1
    v_lshl_add_u32 v6, v2, 4, v6
    v_add_u32 v6, {OL}, v6
    v_cmp_eq_u32 vcc, 0, v2
    v_mov_b32 v3, 0xeeee
    v_mov_b32 v4, 0x4444
    v_add_u32 v104, s48, v{WV}
    v_cndmask_b32 v107, v3, v4, vcc
    v_add_u32 v105, 0x10000, v104
    v_add_u32 v106, {SPARE}, v104
    """)
    for r in range(ACC, ACC + 32):
        a(f"v_mov_b32 v{r}, 0")
    a(f"s_waitcnt vmcnt({vm.wait('wo')}) lgkmcnt(0)")
    a("s_barrier")
    a.stamp(5)
    def ldsfrag_read(f, dst):
        p = (f - 96) >> 1
        ad = ldsfrag_addr(p) + ((f - 96) & 1) * 1024
        if ad >= SPARE: base, off = 106, ad - SPARE
        elif ad >= 65536: base, off = 105, ad - 65536
        else: base, off = 104, ad
        return f"ds_read_b128 {vr(dst,4)}, v{base} offset:{off}"
    lg = VM(15)
    order = [4, 5, 0, 1, 2, 3, 6, 7]
    OFR = 72
    for i in order:
        a(f"ds_read_b128 {vr(OFR+4*i,4)}, v6 offset:{128*i}"); lg.issue(f"o{i}")
    pend = []
    for n, i in enumerate(order):
        if i == 5: pend += [(ldsfrag_read(96 + k, 128 + 4 * k), "o6") for k in range(16)]
        if i == 0: pend += [(ldsfrag_read(112 + k, 192 + 4 * k), "o7") for k in range(16)]
        a(f"s_waitcnt lgkmcnt({lg.wait(f'o{i}')})")
        for c in range(8):
            f = (i * 8 + c) * 2
            if f < 64: src = ar(4 * f, 8)
            elif f < 96: src = vr(128 + 4 * (f - 64), 8)
            else: src = vr(128 + 4 * (f - 96), 8)
            a(f"v_smfmac_f32_16x16x64_bf16 {vr(ACC+4*c,4)}, {vr(OFR+4*i,4)}, {src}, v107")
            if pend:
                x, tag = pend.pop(0); a(x); lg.issue(tag)
    assert not pend
    a.stamp(6)
    a(f"""
    v_and_b32 v2, 1, v5
    v_mul_u32_u24 v2, {4*YSTR}, v2
    v_and_b32 v3, 15, v1
    v_lshl_add_u32 v2, v3, 2, v2
    v_lshrrev_b32 v3, 5, v1
    v_lshl_add_u32 v2, v3, 6, v2
    s_lshl_b32 s41, s37, 9
    s_add_u32 s41, s41, {YL}
    v_add_u32 v2, s41, v2
    v_lshrrev_b32 v3, 5, v0
    v_mul_u32_u24 v3, {YSTR}, v3
    v_and_b32 v4, 31, v0
    v_lshl_add_u32 v3, v4, 5, v3
    v_add_u32 v3, {YL}, v3
    """)
    for cp in range(4):
        b = ACC + 8 * cp
        for r in range(4):
            a(f"v_permlane32_swap_b32 v{b+r}, v{b+4+r}")
        a("s_nop 0")
        for r in range(4):
            a(f"v_add_f32 v{b+r}, v{b+r}, v{b+4+r}")
        for r in range(4):
            a(f"ds_write_b32 v2, v{b+r} offset:{r*YSTR + cp*128}")
    for p in range(8):
        a(f"v_lshlrev_b32 v{72+2*p}, 16, v{112+p}")
        a(f"v_and_b32 v{73+2*p}, 0xffff0000, v{112+p}")
    a(f"""
    v_mov_b32 v14, 0x3f803f80
    v_mov_b32 v8, 0
    v_mov_b32 v9, 0
    v_lshrrev_b32 v5, 5, v0
    v_add_u32 v5, s34, v5            ; token
    v_lshrrev_b32 v6, 5, v5
    v_lshlrev_b32 v6, 15, v6
    v_and_b32 v5, 31, v5
    v_lshl_add_u32 v6, v5, 4, v6
    v_lshl_add_u32 v6, v4, 9, v6
    s_mov_b32 s41, {WS_X1}
    s_mov_b32 s42, {WS_XN}
    s_mov_b32 s44, {WS_XN + 16384}
    s_waitcnt lgkmcnt(0)
    s_barrier
    ds_read_b128 v[40:43], v3
    ds_read_b128 v[44:47], v3 offset:16
    ds_read_b128 v[48:51], v3 offset:1024
    ds_read_b128 v[52:55], v3 offset:1040
    """)
    P = lambda x: vr(x, 2)
    for half in range(2):
        a(f"s_waitcnt lgkmcnt({2 - 2*half})")
        for r in range(0, 8, 2):
            a(f"v_pk_add_f32 {P(40+8*half+r)}, {P(40+8*half+r)}, {P(72+8*half+r)}")
        for p in range(4):
            a(f"v_cvt_pk_bf16_f32 v{112+4*half+p}, v{40+8*half+2*p}, v{41+8*half+2*p}")
        for p in range(4):
            a(f"v_dot2c_f32_bf16 v8, v{112+4*half+p}, v14")
            a(f"v_dot2c_f32_bf16 v9, v{112+4*half+p}, v{112+4*half+p}")
        a(f"buffer_store_dwordx4 {vr(112+4*half,4)}, v7, s[20:23], s41 offen offset:{512*half}")
    for p in range(8):
        a(f"v_lshlrev_b32 v{72+2*p}, 16, v{112+p}")
        a(f"v_and_b32 v{73+2*p}, 0xffff0000, v{112+p}")
    for sh in (8, 4, 2, 1):
        a(f"v_add_f32_dpp v8, v8, v8 row_ror:{sh} row_mask:0xf bank_mask:0xf")
        a(f"v_add_f32_dpp v9, v9, v9 row_ror:{sh} row_mask:0xf bank_mask:0xf")
        a("s_nop 0")
    a(f"""
    v_mov_b32 v10, v8
    v_mov_b32 v11, v9
    s_nop 1
    v_permlane16_swap_b32 v8, v10
    v_permlane16_swap_b32 v9, v11
    s_nop 0
    v_add_f32 v8, v8, v10
    v_add_f32 v9, v9, v11
    v_mul_f32 v8, 0x3b000000, v8
    v_mul_f32 v9, 0x3b000000, v9
    v_fma_f32 v9, -v8, v8, v9
    v_max_f32 v9, 0, v9
    v_add_f32 v9, 0x3727c5ac, v9
    v_rsq_f32 v10, v9
    s_nop 0
    v_mul_f32 v12, v8, v10
    v_sub_f32 v12, 0, v12            ; -mean*rstd
    """)
    for half in range(2):
        for r in range(0, 8, 2):
            a(f"v_pk_fma_f32 {P(72+8*half+r)}, {P(72+8*half+r)}, v[10:11], v[12:13] op_sel_hi:[1,0,0]")
        for p in range(4):
            a(f"v_cvt_pk_bf16_f32 v{40+4*half+p}, v{72+8*half+2*p}, v{73+8*half+2*p}")
        a(f"buffer_store_dwordx4 {vr(40+4*half,4)}, v6, s[20:23], {'s42' if half == 0 else 's44'} offen")
    if a.stamps_on:
        a("s_waitcnt vmcnt(0)")
        a.stamp_flush(1, 8)
    a("s_endpgm")

    a.label("attn_fallback")
    CM = 56
    a(f"""
    s_mov_b32 s44, 0x0000ffff
    s_mov_b32 s45, 0x0000ffff
    v_and_b32 v2, 15, v1
    v_lshlrev_b32 v4, 4, v2
    v_lshrrev_b32 v2, 5, v1
    v_lshl_add_u32 v4, v2, 8, v4
    v_and_b32 v2, 27, v1
    v_cmp_eq_u32 vcc, 16, v2
    v_mov_b32 v2, 0x3f803f80
    s_nop 1
    v_cndmask_b32 v24, 0, v2, vcc
    """)
    for r in range(25, 32):
        a(f"v_mov_b32 v{r}, v24")
    for u in range(2):
        l1, l2 = a.newlabel("attn_fb"), a.newlabel("attn_fb")
        a(f"""
        v_mov_b32 v2, 0xff7fffff
        s_mov_b32 s46, {WS_KV}
        """)
        a.label(l1)
        a(f"""
        buffer_load_dwordx4 v[16:19], v{WV}, s[20:23], s46 offen
        s_waitcnt vmcnt(0)
        v_mfma_f32_32x32x16_bf16 v[40:55], v[16:19], {vr(Q[u],4)}, 0
        s_nop 15
        """)
        for e in range(0, 16, 2):
            a(f"v_max3_f32 v2, v2, v{40+e}, v{41+e}")
        a(f"""
        s_add_u32 s46, s46, 2048
        s_cmp_lt_u32 s46, {WS_KV + 131072}
        s_cbranch_scc1 {l1}
        v_mov_b32 v3, v2
        s_nop 1
        v_permlane32_swap_b32 v2, v3
        s_nop 1
        v_max_f32 v2, v2, v3
        v_sub_f32 v2, 0, v2
        """)
        for r in range(16):
            a(f"v_mov_b32 v{CM+r}, v2")
            a(f"v_mov_b32 v{O[u]+r}, 0")
        a(f"s_mov_b32 s46, {WS_KV}")
        a.label(l2)
        a(f"""
        buffer_load_dwordx4 v[16:19], v{WV}, s[20:23], s46 offen
        s_mov_b64 exec, s[44:45]
        buffer_load_dwordx4 v[24:27], v4, s[20:23], s46 offen offset:1024
        buffer_load_dwordx4 v[28:31], v4, s[20:23], s46 offen offset:1536
        s_mov_b64 exec, -1
        s_waitcnt vmcnt(0)
        v_mfma_f32_32x32x16_bf16 v[40:55], v[16:19], {vr(Q[u],4)}, {vr(CM,16)}
        s_nop 15
        """)
        for e in range(16):
            a(f"v_exp_f32 v{40+e}, v{40+e}")
        a(f"""
        s_nop 1
        v_smfmac_f32_32x32x32_bf16 {vr(O[u],16)}, v[24:27], v[40:47], v{IDX}
        v_smfmac_f32_32x32x32_bf16 {vr(O[u],16)}, v[28:31], v[48:55], v{IDX}
        s_add_u32 s46, s46, 2048
        s_cmp_lt_u32 s46, {WS_KV + 131072}
        s_cbranch_scc1 {l2}
        s_nop 15
        """)
    a("s_branch attn_norm")
    return [("attn1_kernel", 512, 256), ("attn2_kernel", 512, 256)]
```

```python
from asmlib import *
from layout import *

DOWN_LDS = 131072
RSTR = 272
def gen_down(a):
    for ent, first in (("down1_kernel", True), ("down2_kernel", False)):
        a.raw(".p2align 8")
        a.raw(f".globl {ent}")
        a.raw(f".type {ent},@function")
        a.label(ent)
        a("s_cmp_ge_u32 s2, 256")
        a("s_cbranch_scc1 down_exit")
        a("s_load_dwordx4 s[24:27], s[0:1], 64")
        a("s_load_dwordx2 s[32:33], s[0:1], 88")
        a("s_load_dwordx2 s[28:29], s[0:1], 8")
        a(f"s_mov_b32 s58, {512*1024 if first else 0}")
        a("s_waitcnt lgkmcnt(0)")
        if first:
            srd(a, 8, 32, 2048 * 1024, WS_X2)
        else:
            srd(a, 8, 26, 2048 * 1024)
        a("s_branch down_body")
    a.label("down_exit")
    a("s_endpgm")
    a.label("down_body")
    a.stamp(0)
    srd(a, 12, 24, 1376 * 1024)
    srd(a, 20, 32, WS_END)
    a("""
    s_and_b32 s34, s2, 7
    s_lshr_b32 s35, s2, 3
    s_lshr_b32 s36, s35, 3
    s_lshl_b32 s34, s34, 2
    s_add_u32 s34, s34, s36
    s_and_b32 s35, s35, 7
    v_lshrrev_b32 v2, 6, v0
    v_and_b32 v1, 63, v0
    v_readfirstlane_b32 s37, v2
    """)
    a(f"""
    v_lshrrev_b32 v3, 2, v1
    v_lshlrev_b32 v3, 10, v3
    v_and_b32 v4, 3, v1
    v_lshl_add_u32 v3, v4, 4, v3
    s_lshl_b32 s39, s35, 7
    v_add_u32 v3, s39, v3
    v_lshlrev_b32 v6, 4, v1
    s_lshl_b32 s40, s34, 1
    s_mul_i32 s40, s40, {86*1024}
    s_add_u32 s40, s40, {WS_H}
    s_lshl_b32 s41, s37, 10
    s_add_u32 s40, s40, s41
    s_lshl_b32 s42, s37, 14
    s_lshl_b32 s43, s37, 15
    """)
    vm = VM()
    HR = 128
    NS = 22
    LA = 5
    def loads(i):
        slot = i & 15
        g = [[f"s_add_u32 m0, s43, {slot*2048}", f"s_add_u32 s46, s42, {i*65536}", "buffer_load_dwordx4 v3, s[12:15], s46 offen lds"],
             [f"s_add_u32 s44, s40, {i*4096}", f"buffer_load_dwordx4 {vr(HR+8*slot,4)}, v6, s[20:23], s44 offen"],
             [f"s_add_u32 m0, s43, {slot*2048+1024}", "s_add_u32 s46, s46, 64", "buffer_load_dwordx4 v3, s[12:15], s46 offen lds"],
             [f"s_add_u32 s45, s44, {86*1024}", f"buffer_load_dwordx4 {vr(HR+8*slot+4,4)}, v6, s[20:23], s45 offen"]]
        return [(x, f"s{i}") for x in g]
    def emit(grp):
        x, tag = grp
        for l in x: a(l)
        vm.issue(tag)
    for i in range(LA):
        for g in loads(i): emit(g)
    a("""
    v_lshrrev_b32 v8, 5, v1
    v_lshlrev_b32 v8, 8, v8
    v_bfe_u32 v9, v1, 2, 2
    v_lshl_add_u32 v8, v9, 6, v8
    v_bfe_u32 v9, v1, 4, 1
    v_lshl_add_u32 v8, v9, 5, v8
    v_lshl_add_u32 v8, v4, 3, v8
    v_add_u32 v8, s43, v8
    """)
    a(f"""
    v_lshrrev_b32 v9, 2, v0
    s_lshl_b32 s44, s34, 6
    v_add_u32 v10, s44, v9
    v_lshlrev_b32 v10, 10, v10
    v_lshl_add_u32 v10, v4, 4, v10   ; token*1024 + (t&3)*16
    s_add_u32 s48, s39, {WS_X1}
    """)
    ACC = 64
    WF = 16
    def reads(i):
        slot = i & 15
        f = WF + 8 * (i & 1)
        return [f"ds_read_b64_tr_b16 {vr(f+4*ct+2*B,2)}, v8 offset:{slot*2048 + ct*1024 + B*512}" for ct in range(2) for B in range(2)]
    a.stamp(1)
    a(f"s_waitcnt vmcnt({vm.wait('s0')})")
    a.stamp(2)
    for x in reads(0): a(x)
    for i in range(NS):
        if i in (6, 12, 18): a.stamp(2 + i // 6)
        slot = i & 15
        f = WF + 8 * (i & 1)
        lq = loads(i + LA) if i + LA < NS else []
        if i + LA == NS + 1:
            lq = [(["s_mov_b32 s56, s28", "s_mov_b32 s57, s29", "s_mov_b32 s59, 0x00020000", "v_lshlrev_b32 v7, 7, v1", "s_lshr_b32 s44, s2, 3",
                    "s_lshl_b32 s44, s44, 1", "s_and_b32 s45, s37, 1", "s_add_u32 s44, s44, s45", "s_lshl_b32 s44, s44, 13",
                    "buffer_load_dword v5, v7, s[56:59], s44 offen"], "pf")]
        if i + LA == NS:
            lq = [([f"buffer_load_dwordx4 v[32:35], v10, s[20:23], s48 offen"], "res"), ([f"buffer_load_dwordx4 v[36:39], v10, s[20:23], s48 offen offset:64"], "res")]
        if i + LA == NS + 2:
            code_pf(a, 80, 7, 5, tmp=84); vm.issue("pf")
        a("s_waitcnt lgkmcnt(0)")
        if i + 1 == NS:
            a("s_cmp_ge_u32 s37, 2")
            a("s_cbranch_scc1 down_skip")
        n = 0
        for tt in range(2):
            for ct in range(2):
                d = ACC + 16 * (2 * tt + ct)
                a(f"v_mfma_f32_32x32x16_bf16 {vr(d,16)}, {vr(f+4*ct,4)}, {vr(HR+8*slot+4*tt,4)}, {vr(d,16) if i else 0}")
                if n == 0 and i + 1 < NS:
                    a(f"s_waitcnt vmcnt({vm.wait(f's{i+1}')})")
                    for x in reads(i + 1): a(x)
                elif lq:
                    emit(lq.pop(0))
                    if n == 3 and lq: emit(lq.pop(0))
                n += 1
        assert not lq
    a.label("down_skip")
    a.stamp(6)
    a(f"""
    v_and_b32 v11, 31, v1
    v_mul_u32_u24 v11, {RSTR}, v11
    v_lshrrev_b32 v12, 5, v1
    v_lshl_add_u32 v11, v12, 4, v11
    v_add_u32 v11, s43, v11
    v_mul_u32_u24 v12, {RSTR}, v9
    v_lshl_add_u32 v12, v4, 5, v12   ; (t>>2)*RSTR + (t&3)*32
    v_add_u32 v13, 0x10000, v12
    s_nop 7
    """)
    for tt in range(2):
        for ct in range(2):
            for q in range(4):
                a(f"ds_write_b128 v11, {vr(ACC+16*(2*tt+ct)+4*q,4)} offset:{tt*32*RSTR + ct*128 + q*32}")
    a("""
    s_waitcnt lgkmcnt(0)
    s_barrier
    """)
    for half in range(2):
        for w in range(4):
            for q in range(2):
                a(f"ds_read_b128 {vr(ACC+32*half+8*w+4*q,4)}, v{12 + (w>>1)} offset:{(w&1)*32768 + half*128 + q*16}")
    a(f"s_waitcnt vmcnt({vm.wait('res')})")
    for half in range(2):
        x = 32 + 4 * half
        b = ACC + 32 * half
        for p in range(4):
            a(f"v_lshlrev_b32 v{40+2*p}, 16, v{x+p}")
            a(f"v_and_b32 v{41+2*p}, 0xffff0000, v{x+p}")
        a(f"s_waitcnt lgkmcnt({8 if half == 0 else 0})")
        P = lambda x: vr(x, 2)
        for r in range(0, 8, 2):
            a(f"v_pk_add_f32 {P(b+r)}, {P(b+r)}, {P(b+8+r)}")
            a(f"v_pk_add_f32 {P(b+16+r)}, {P(b+16+r)}, {P(b+24+r)}")
        for r in range(0, 8, 2):
            a(f"v_pk_add_f32 {P(b+r)}, {P(b+r)}, {P(b+16+r)}")
        for r in range(0, 8, 2):
            a(f"v_pk_add_f32 {P(b+r)}, {P(b+r)}, {P(40+r)}")
        for p in range(4):
            a(f"v_cvt_pk_bf16_f32 v{b+p}, v{b+2*p}, v{b+2*p+1}")
        a(f"buffer_store_dwordx4 {vr(b,4)}, v10, s[8:11], s39 offen offset:{64*half}")
    if a.stamps_on:
        a("s_waitcnt vmcnt(0)")
        a.stamp_flush(3, 8)
    a("s_endpgm")
    return [("down1_kernel", 256, 256), ("down2_kernel", 256, 256)]
```

```python
from asmlib import *
from layout import *
import math

GU_LDS = 163840
STG = 40960
K1 = -2.0 * math.sqrt(2.0 / math.pi) * math.log2(math.e)
K2 = K1 * 0.044715

def gen_gu(a):
    a.raw(".p2align 8")
    a.raw(".globl gu_kernel")
    a.raw(".type gu_kernel,@function")
    a.label("gu_kernel")
    a.stamp(0)
    a("""
    s_cmp_ge_u32 s2, 256
    s_cbranch_scc1 gu_exit
    s_load_dwordx4 s[24:27], s[0:1], 48
    s_load_dwordx2 s[32:33], s[0:1], 88
    s_load_dwordx2 s[28:29], s[0:1], 64
    s_and_b32 s34, s2, 7
    s_lshr_b32 s35, s2, 3
    s_lshr_b32 s36, s35, 4
    s_lshl_b32 s34, s34, 1
    s_add_u32 s34, s34, s36
    s_and_b32 s35, s35, 15           ; cbk
    s_cmp_eq_u32 s35, 15
    s_cbranch_scc1 gu_exit
    v_lshrrev_b32 v2, 6, v0
    v_and_b32 v1, 63, v0
    v_readfirstlane_b32 s37, v2
    s_add_u32 s38, s34, s35
    s_and_b32 s38, s38, 7
    """)
    a("""
    v_lshrrev_b32 v3, 2, v1
    v_mul_u32_u24 v3, 2752, v3
    s_mul_i32 s39, s35, 192
    v_add_u32 v3, s39, v3
    v_and_b32 v5, 3, v1
    v_xor_b32 v6, 2, v5
    v_lshl_add_u32 v4, v6, 4, v3
    v_lshl_add_u32 v3, v5, 4, v3
    v_lshlrev_b32 v6, 4, v1
    """)
    a(f"""
    s_lshl_b32 s40, s34, 2
    s_add_u32 s40, s40, s37
    s_lshl_b32 s40, s40, 15
    s_add_u32 s40, s40, {WS_XN}
    s_lshl_b32 s41, s37, 12
    s_mul_i32 s42, s37, {16*2752}
    s_lshl_b32 s43, s37, 10
    """)
    a("""
    s_and_b32 s44, s37, 1
    s_lshl_b32 s44, s44, 13
    v_add_u32 v8, s44, v6            ; X base
    v_bfe_u32 v9, v1, 4, 1           ; isup
    v_mul_u32_u24 v10, 12288, v9
    v_lshrrev_b32 v11, 5, v1
    v_lshl_add_u32 v10, v11, 9, v10
    v_bfe_u32 v11, v1, 2, 2
    v_lshl_add_u32 v10, v11, 6, v10
    v_lshl_add_u32 v10, v5, 3, v10
    v_add_u32 v10, 16384, v10
    v_lshl_add_u32 v11, v9, 5, v10   ; u01=0 base
    v_xor_b32 v9, 1, v9
    v_lshl_add_u32 v10, v9, 5, v10   ; u01=1 base
    s_lshr_b32 s54, s37, 1
    s_lshl_b32 s45, s54, 13
    s_cmp_eq_u32 s54, 0
    s_cselect_b64 vcc, -1, 0
    v_cndmask_b32 v9, v10, v11, vcc
    """)
    a("s_lshl_b32 s45, s54, 13")
    for slot in range(4):
        b = 12 + 4 * slot
        a(f"""
        v_add_u32 v{b}, {slot*STG}, v8
        s_add_u32 s47, s45, {slot*STG}
        v_add_u32 v{b+1}, s47, v11
        v_add_u32 v{b+2}, s47, v10
        v_add_u32 v{b+3}, {slot*STG + 4096}, v9
        """)
    a("s_waitcnt lgkmcnt(0)")
    srd(a, 20, 32, WS_END)
    srd(a, 8, 24, 512 * 2752)
    srd(a, 12, 26, 512 * 2752)
    vm = VM()
    def dma(st):
        slot = st & 3
        g = []
        g.append([f"s_add_u32 s44, s38, {st}", "s_and_b32 s44, s44, 7", f"s_add_u32 m0, s41, {slot*STG}", "s_lshl_b32 s45, s44, 12", "s_add_u32 s45, s45, s40",
                  "buffer_load_dwordx4 v6, s[20:23], s45 offen lds"])
        g.append([f"s_mul_i32 s46, s44, {64*2752}", "buffer_load_dwordx4 v6, s[20:23], s45 offen offset:1024 lds"])
        g.append(["s_add_u32 s46, s46, s42", "buffer_load_dwordx4 v6, s[20:23], s45 offen offset:2048 lds"])
        g.append(["buffer_load_dwordx4 v6, s[20:23], s45 offen offset:3072 lds"])
        for p in range(3):
            for mat in range(2):
                g.append([f"s_add_u32 m0, s43, {slot*STG + 16384 + mat*12288 + p*4096}", f"s_add_u32 s47, s46, {64*p}",
                          f"buffer_load_dwordx4 v{3+mat}, s[{8+4*mat}:{11+4*mat}], s47 offen lds"])
        return [(x, f"st{st}") for x in g]
    def emit(grp):
        x, tag = grp
        for l in x: a(l)
        vm.issue(tag)
    for st in range(2):
        for g in dma(st): emit(g)
    ACC = 80
    FR = 32
    def reads(k):
        st, ks = k >> 2, k & 3
        b = 12 + 4 * (st & 3)
        f = FR + 20 * (k & 1)
        r = []
        r.append(f"ds_read_b128 {vr(f,4)}, v{b} offset:{ks*1024}")
        for B in range(2):
            r.append(f"ds_read_b64_tr_b16 {vr(f+8+2*B,2)}, v{b+1} offset:{ks*1024 + B*256}")
        r.append(f"ds_read_b128 {vr(f+4,4)}, v{b} offset:{4096 + ks*1024}")
        for i in range(1, 3):
            for B in range(2):
                r.append(f"ds_read_b64_tr_b16 {vr(f+8+4*i+2*B,2)}, v{b+1+i} offset:{ks*1024 + B*256}")
        return r
    def stage_sync(st):
        a(f"s_waitcnt vmcnt({vm.wait(f'st{st}')})")
        a("s_barrier")
    a.stamp(1)
    stage_sync(0)
    a.stamp(2)
    for x in reads(0): a(x)
    dq = []
    for k in range(32):
        st, ks = k >> 2, k & 3
        f = FR + 20 * (k & 1)
        a("s_waitcnt lgkmcnt(0)")
        if ks == 0 and st + 2 < 8:
            dq = dma(st + 2)
        pend = reads(k + 1) if k + 1 < 32 else []
        n = 0
        for i in range(3):
            for tt in range(2):
                d = ACC + 16 * (2 * i + tt)
                a(f"v_mfma_f32_32x32x16_bf16 {vr(d,16)}, {vr(f+8+4*i,4)}, {vr(f+4*tt,4)}, {vr(d,16) if k else 0}")
                if n == 0 and ks == 3 and k + 1 < 32:
                    assert not dq
                    stage_sync(st + 1)
                    if st in (1, 3, 5): a.stamp(3 + st // 2)
                cnt = 2 if n < 4 else 0
                for _ in range(cnt):
                    if pend: a(pend.pop(0))
                if n >= 2 and dq and ks < 3:
                    emit(dq.pop(0))
                n += 1
        assert not pend
    srd(a, 56, 28, 1376 * 1024)
    a("""
    v_lshlrev_b32 v7, 7, v1
    s_lshr_b32 s44, s2, 3
    s_lshr_b32 s45, s2, 7
    s_sub_u32 s44, s44, s45
    s_mul_i32 s44, s44, 6
    s_add_u32 s44, s44, s37
    s_lshl_b32 s44, s44, 13
    s_add_u32 s45, s44, 0x8000
    buffer_load_dword v10, v7, s[56:59], s44 offen
    buffer_load_dword v11, v7, s[56:59], s45 offen
    """)
    a.stamp(6)
    a(f"""
    v_mov_b32 v2, {f2hex(K1)}
    v_mov_b32 v3, {f2hex(K1)}
    v_mov_b32 v4, {f2hex(K2)}
    v_mov_b32 v5, {f2hex(K2)}
    v_mov_b32 v8, 1.0
    v_mov_b32 v9, 1.0
    s_mul_i32 s45, s35, 6
    s_lshl_b32 s46, s54, 2
    s_add_u32 s50, s45, s46
    s_add_u32 s51, s50, 1
    s_add_u32 s52, s45, s54
    s_add_u32 s52, s52, 2
    s_lshl_b32 s46, s34, 2
    s_and_b32 s47, s37, 1
    s_lshl_b32 s47, s47, 1
    s_add_u32 s46, s46, s47
    s_mul_i32 s46, s46, {86*1024}
    s_add_u32 s46, s46, {WS_H}
    """)
    for i in range(3):
        skip = a.newlabel("gu_skip")
        a(f"s_cmp_ge_u32 s{50+i}, 86")
        a(f"s_cbranch_scc1 {skip}")
        a(f"s_lshl_b32 s47, s{50+i}, 10")
        a(f"s_add_u32 s47, s47, s46")
        a(f"s_add_u32 s53, s47, {86*1024}")
        for tt in range(2):
            d = ACC + 16 * (2 * i + tt)
            T = 32 + 8 * tt
            P = lambda x: vr(x, 2)
            for r in range(0, 8, 2):
                a(f"v_pk_mul_f32 {P(T+r)}, {P(d+r)}, {P(d+r)}")
            for r in range(0, 8, 2):
                a(f"v_pk_fma_f32 {P(T+r)}, {P(T+r)}, v[4:5], v[2:3]")
            for r in range(0, 8, 2):
                a(f"v_pk_mul_f32 {P(T+r)}, {P(T+r)}, {P(d+r)}")
            for r in range(8):
                a(f"v_exp_f32 v{T+r}, v{T+r}")
            for r in range(0, 8, 2):
                a(f"v_pk_mul_f32 {P(d+r)}, {P(d+r)}, {P(d+8+r)}")
            for r in range(0, 8, 2):
                a(f"v_pk_add_f32 {P(T+r)}, {P(T+r)}, v[8:9]")
            for r in range(8):
                a(f"v_rcp_f32 v{T+r}, v{T+r}")
            a("s_nop 0")
            for r in range(0, 8, 2):
                a(f"v_pk_mul_f32 {P(d+r)}, {P(d+r)}, {P(T+r)}")
            for p in range(4):
                a(f"v_cvt_pk_bf16_f32 v{d+p}, v{d+2*p}, v{d+2*p+1}")
            a(f"buffer_store_dwordx4 {vr(d,4)}, v6, s[20:23], {'s47' if tt == 0 else 's53'} offen")
        a.label(skip)
    if a.stamps_on:
        a("s_waitcnt vmcnt(0)")
        a.stamp_flush(2, 8)
    a.label("gu_exit")
    a("s_endpgm")
    return [("gu_kernel", 176, 176)]
```

```python
from asmlib import *
from layout import *

XL = 0
WL = 65536
KL = 131072
PL = 147456
CSX = 149504
QKV_LDS = 150016

def gen_qkv(a):
    for ent, first in (("qkv1_kernel", True), ("qkv2_kernel", False)):
        a.raw(".p2align 8")
        a.raw(f".globl {ent}")
        a.raw(f".type {ent},@function")
        a.label(ent)
        a("s_cmp_ge_u32 s2, 256")
        a("s_cbranch_scc1 qkv_exit")
        a("s_load_dwordx4 s[24:27], s[0:1], 0")
        a("s_load_dwordx4 s[28:31], s[0:1], 16")
        a("s_load_dwordx2 s[32:33], s[0:1], 88")
        a("s_load_dwordx2 s[52:53], s[0:1], 32")
        a(f"s_mov_b32 s55, {1 if first else 0}")
        a("s_waitcnt lgkmcnt(0)")
        if first:
            srd(a, 8, 24, 2048 * 1024)
        else:
            srd(a, 8, 32, 2048 * 1024, WS_X2)
        a("s_branch qkv_body")
    a.label("qkv_exit")
    a("s_endpgm")
    a.label("qkv_body")
    a.stamp(0)
    srd(a, 12, 26, 512 * 1024)
    a("""
    s_and_b32 s34, s2, 7
    s_lshr_b32 s35, s2, 3
    s_lshr_b32 s36, s35, 3
    s_lshl_b32 s34, s34, 2
    s_add_u32 s34, s34, s36          ; rb
    s_and_b32 s35, s35, 7            ; cb
    v_lshrrev_b32 v2, 6, v0
    v_and_b32 v1, 63, v0
    v_readfirstlane_b32 s37, v2
    s_add_u32 s38, s34, s35
    s_and_b32 s38, s38, 3
    """)
    a("v_lshlrev_b32 v121, 7, v1")
    code_pf(a, 80, 121, 122, tmp=84)
    a("""
    v_lshrrev_b32 v4, 2, v1          ; row
    v_lshrrev_b32 v5, 4, v1
    v_sub_u32 v6, 0, v5
    v_xor_b32 v6, v6, v1
    v_and_b32 v6, 3, v6
    s_lshl_b32 s39, s34, 6
    s_lshl_b32 s40, s37, 4
    s_add_u32 s39, s39, s40
    v_add_u32 v4, s39, v4
    v_lshlrev_b32 v3, 10, v4
    v_lshl_add_u32 v3, v6, 4, v3
    """)
    a("""
    v_lshrrev_b32 v8, 5, v1
    v_lshlrev_b32 v8, 3, v8
    v_bfe_u32 v9, v1, 3, 2
    v_add_u32 v8, v8, v9
    v_lshlrev_b32 v7, 10, v8
    v_lshrrev_b32 v9, 1, v1
    v_xor_b32 v9, v9, v5
    v_and_b32 v9, 3, v9
    v_lshl_add_u32 v7, v9, 5, v7
    v_and_b32 v9, 1, v1
    v_lshl_add_u32 v7, v9, 4, v7
    s_lshl_b32 s40, s35, 7
    s_lshl_b32 s41, s37, 15
    s_add_u32 s40, s40, s41
    v_add_u32 v7, s40, v7
    s_lshl_b32 s41, s37, 12          ; w*4096
    s_lshl_b32 s48, s37, 14          ; w*16384
    """)
    vm = VM()
    vm.issue('code')
    def wx_loads(q):
        g = []
        hd = [f"s_add_u32 s43, s38, {q}", "s_and_b32 s43, s43, 3", "s_lshl_b32 s44, s43, 17", "s_lshl_b32 s45, s43, 8"]
        for s in range(4):
            B, hh = s >> 1, s & 1
            g.append(hd + [f"s_add_u32 m0, s48, {XL + (4*q+s)*1024}", f"s_add_u32 s47, s45, {64*s}", "buffer_load_dwordx4 v3, s[8:11], s47 offen lds"])
            hd = []
            g.append([f"s_add_u32 m0, s41, {WL + q*16384 + B*2048 + hh*1024}", f"s_add_u32 s47, s44, {(16*hh + 4*B)*1024}", "buffer_load_dwordx4 v7, s[12:15], s47 offen lds"])
        return [(x, f"c{q}") for x in g]
    def kv_load(q):
        return [([f"s_add_u32 m0, s42, {q*4096}", "s_lshl_b32 s46, s43, 12", "buffer_load_dwordx4 v10, s[16:19], s46 offen lds"], f"c{q}")]
    def emit(grp):
        x, tag = grp
        for l in x: a(l)
        vm.issue(tag)
    for g in wx_loads(0): emit(g)
    a(f"""
    s_cmp_lt_u32 s35, 4
    s_cselect_b32 s16, s28, s30
    s_cselect_b32 s17, s29, s31
    s_mov_b32 s18, 0x4000
    s_mov_b32 s19, 0x00020000
    v_bfe_u32 v8, v1, 3, 2
    v_lshlrev_b32 v8, 3, v8
    v_lshrrev_b32 v11, 5, v1
    v_lshl_add_u32 v8, v11, 2, v8
    v_bfe_u32 v11, v1, 1, 2
    v_add_u32 v8, v8, v11
    v_lshlrev_b32 v10, 5, v8
    v_lshl_add_u32 v10, v9, 4, v10
    s_lshl_b32 s40, s37, 10
    v_add_u32 v10, s40, v10
    s_add_u32 s42, s40, {KL}
    """)
    for g in kv_load(0) + wx_loads(1) + kv_load(1): emit(g)
    srd(a, 20, 32, WS_QKV_END)
    a(f"""
    s_mov_b32 s56, s52
    s_mov_b32 s57, s53
    s_mov_b32 s58, 0x80000
    s_mov_b32 s59, 0x00020000
    s_cmp_eq_u32 s37, 3
    s_cselect_b32 s55, s55, 0
    s_cmp_eq_u32 s55, 0
    s_cselect_b32 s58, 0, s58
    v_lshrrev_b32 v8, 2, v1
    v_lshlrev_b32 v8, 10, v8
    v_and_b32 v9, 3, v1
    v_lshl_add_u32 v8, v9, 4, v8
    s_lshr_b32 s50, s2, 4            ; ks
    s_and_b32 s51, s2, 15
    s_lshl_b32 s60, s50, 15
    s_lshl_b32 s61, s51, 6
    s_add_u32 s60, s60, s61
    s_add_u32 s61, s60, 16384
    v_mov_b32 v51, v8
    """)
    wo_g = [(["buffer_load_dwordx4 v[112:115], v51, s[56:59], s60 offen"], "wo"), (["buffer_load_dwordx4 v[116:119], v51, s[56:59], s61 offen"], "wo")]
    a.stamp(1)
    a(f"""
    v_and_b32 v4, 15, v1
    v_lshrrev_b32 v8, 2, v4
    v_sub_u32 v8, 0, v8
    v_xor_b32 v8, v8, v5
    v_and_b32 v8, 3, v8
    v_lshlrev_b32 v11, 6, v4
    v_lshl_add_u32 v11, v8, 4, v11
    v_add_u32 v11, s48, v11
    v_add_u32 v6, s39, v4            ; token
    v_lshrrev_b32 v8, 5, v1
    v_lshlrev_b32 v8, 10, v8
    v_bfe_u32 v9, v1, 2, 3
    v_lshl_add_u32 v8, v9, 7, v8
    v_and_b32 v9, 3, v1
    v_lshl_add_u32 v8, v9, 3, v8
    v_add_u32 v8, {WL}, v8
    v_bfe_u32 v9, v1, 3, 2           ; rho>>1
    """)
    for j in range(4):
        a(f"""
        s_add_u32 s40, s37, {j}
        s_and_b32 s40, s40, 3
        v_xor_b32 v{12+j}, s40, v9
        v_lshl_add_u32 v{12+j}, v{12+j}, 5, v8
        """)
    a(f"""
    v_lshlrev_b32 v50, 3, v1
    v_add_u32 v50, {KL}, v50
    """)
    for r in range(44, 48):
        a(f"v_mov_b32 v{r}, 0x3f803f80")
    a("v_mov_b32 v48, 0")
    a("v_mov_b32 v49, 0")
    WF = 64
    def reads(s):
        b = WF + (s & 1) * 24
        r = [f"ds_read_b128 {vr(b,4)}, v11 offset:{s*1024}"]
        for j in range(4):
            for B in range(2):
                r.append(f"ds_read_b64_tr_b16 {vr(b + 4 + j*4 + B*2, 2)}, v{12+j} offset:{s*4096 + B*2048}")
        for B in range(2):
            r.append(f"ds_read_b64_tr_b16 {vr(b + 20 + B*2, 2)}, v50 offset:{s*1024 + B*512}")
        return r
    def sync(q):
        a(f"s_waitcnt vmcnt({vm.wait(f'c{q}')})")
        a("s_barrier")
        a.stamp(2 + q)
    sync(0)
    for x in reads(0): a(x)
    for s in range(16):
        b = WF + (s & 1) * 24
        x = b
        a("s_waitcnt lgkmcnt(0)")
        if s % 4 == 3 and s < 15:
            sync(s // 4 + 1)
        pend = reads(s + 1) if s < 15 else []
        C = (lambda r: vr(r, 4)) if s else (lambda r: "0")
        mf = [f"v_mfma_f32_16x16x32_bf16 {vr(16+4*j,4)}, {vr(b+4+4*j,4)}, {vr(x,4)}, {C(16+4*j)}" for j in range(4)]
        mf += [f"v_mfma_f32_16x16x32_bf16 v[32:35], {vr(b+4,4)}, v[44:47], {C(32)}",
               f"v_mfma_f32_16x16x32_bf16 v[36:39], {vr(b+20,4)}, {vr(x,4)}, {C(36)}",
               f"v_mfma_f32_16x16x32_bf16 v[40:43], {vr(b+20,4)}, v[44:47], {C(40)}"]
        dots = []
        for c in range(4):
            dots += [f"v_dot2c_f32_bf16 v48, v{x+c}, v44", f"v_dot2c_f32_bf16 v49, v{x+c}, v{x+c}"]
        if s == 0: lq = wx_loads(2) + kv_load(2) + wx_loads(3) + kv_load(3) + wo_g
        for n, m in enumerate(mf):
            a(m)
            for _ in range(2):
                if pend: a(pend.pop(0))
            if n in (1, 3, 5, 6) and lq: emit(lq.pop(0))
            if n >= 5 or not pend:
                for _ in range(4):
                    if dots: a(dots.pop(0))
        for d in dots: a(d)
    assert not lq
    a.stamp(6)
    a(f"""
    s_nop 3
    v_lshlrev_b32 v8, 4, v5
    s_lshl_b32 s40, s37, 6
    v_add_u32 v9, s40, v8
    v_add_u32 v9, {CSX}, v9          ; CSX + w*64 + g*16
    v_mov_b32 v50, v48
    v_mov_b32 v51, v49
    ds_write_b128 v9, v[32:35]
    ds_write_b128 v9, v[32:35] offset:256
    v_permlane32_swap_b32 v48, v50
    v_permlane32_swap_b32 v49, v51
    s_nop 1
    v_add_f32 v48, v48, v50
    v_add_f32 v49, v49, v51
    v_mov_b32 v50, v48
    v_mov_b32 v51, v49
    s_nop 1
    v_permlane16_swap_b32 v48, v50
    v_permlane16_swap_b32 v49, v51
    s_nop 1
    v_add_f32 v48, v48, v50
    v_add_f32 v49, v49, v51
    v_mul_f32 v48, 0x3b000000, v48
    v_mul_f32 v49, 0x3b000000, v49   ; E[x^2]
    v_fma_f32 v49, -v48, v48, v49    ; var
    v_max_f32 v49, 0, v49
    v_add_f32 v49, 0x3727c5ac, v49   ; + 1e-5
    v_rsq_f32 v49, v49               ; rstd
    s_waitcnt lgkmcnt(0)
    s_barrier
    ds_read_b128 v[68:71], v9 offset:64
    ds_read_b128 v[72:75], v9 offset:128
    ds_read_b128 v[76:79], v9 offset:192
    v_mul_f32 v50, {QSCALE_HEX}, v49
    """)
    for r in range(4):
        a(f"v_fma_f32 v{36+r}, -v48, v{40+r}, v{36+r}")
    for r in range(4):
        a(f"v_mul_f32 v{36+r}, v49, v{36+r}")
    a("v_cvt_pk_bf16_f32 v36, v36, v37")
    a("v_cvt_pk_bf16_f32 v37, v38, v39")
    a("""
    v_lshlrev_b32 v9, 10, v6
    v_lshl_add_u32 v9, v5, 3, v9
    s_lshl_b32 s40, s35, 7
    """)
    for j in range(4):
        cs = 32 if j == 0 else 64 + 4 * j
        if j == 1: a("s_waitcnt lgkmcnt(0)")
        a(f"""
        s_add_u32 s41, s37, {j}
        s_and_b32 s41, s41, 3
        s_lshl_b32 s41, s41, 5
        s_add_u32 s41, s41, s40
        """)
        for r in range(4):
            a(f"v_fma_f32 v{16+4*j+r}, -v48, v{cs+r}, v{16+4*j+r}")
        for r in range(4):
            a(f"v_mul_f32 v{16+4*j+r}, v50, v{16+4*j+r}")
        a(f"v_cvt_pk_bf16_f32 v{16+4*j}, v{16+4*j}, v{17+4*j}")
        a(f"v_cvt_pk_bf16_f32 v{17+4*j}, v{18+4*j}, v{19+4*j}")
        a(f"buffer_store_dwordx2 {vr(16+4*j,2)}, v9, s[20:23], s41 offen offset:{WS_Q}")
    if a.stamps_on:
        a('s_waitcnt vmcnt(0)')
        a("v_mov_b32 v120, v1")
        a.stamp_flush(0, 8)
        a('s_mov_b64 exec, -1')
        a("v_mov_b32 v1, v120")
    a(f"""
    s_and_b32 s40, s35, 3
    s_cmp_lg_u32 s40, s37
    s_cbranch_scc1 qkv_kvdone
    v_lshrrev_b32 v8, 5, v6
    v_lshlrev_b32 v8, 11, v8         ; tile*2048
    s_mov_b32 s40, {WS_KV}
    s_cmp_lt_u32 s35, 4
    s_cbranch_scc0 qkv_vstore
    """)
    a(f"""
    v_and_b32 v9, 31, v6
    v_lshl_add_u32 v8, v9, 4, v8
    v_lshrrev_b32 v9, 1, v5
    v_lshl_add_u32 v8, v9, 9, v8
    v_and_b32 v9, 1, v5
    v_lshl_add_u32 v8, v9, 3, v8
    buffer_store_dwordx2 v[36:37], v8, s[20:23], s40 offen
    s_branch qkv_kvdone
    """)
    a.label("qkv_vstore")
    a(f"""
    v_bfe_u32 v9, v6, 3, 2
    v_lshl_add_u32 v8, v9, 8, v8
    v_and_b32 v9, 7, v6
    v_lshl_add_u32 v8, v9, 1, v8
    v_lshl_add_u32 v8, v5, 6, v8
    buffer_store_short v36, v8, s[20:23], s40 offen offset:1024
    buffer_store_short_d16_hi v36, v8, s[20:23], s40 offen offset:1040
    buffer_store_short v37, v8, s[20:23], s40 offen offset:1056
    buffer_store_short_d16_hi v37, v8, s[20:23], s40 offen offset:1072
    """)
    a.label("qkv_kvdone")
    a(f"""
    s_cmp_eq_u32 s55, 0
    s_cbranch_scc1 qkv_exit
    v_lshlrev_b32 v8, 4, v1
    v_add_u32 v9, {PL}, v8
    s_waitcnt vmcnt(0)
    ds_write_b128 v9, v[112:115]
    ds_write_b128 v9, v[116:119] offset:1024
    v_lshrrev_b32 v10, 5, v1         ; row = 16*(g>>1) + 4*(g&1) + 2B + (r'&1) + 8*(r'>>1)
    v_lshlrev_b32 v10, 10, v10
    v_bfe_u32 v11, v1, 4, 1
    v_lshl_add_u32 v10, v11, 8, v10
    v_bfe_u32 v11, v1, 2, 1
    v_lshl_add_u32 v10, v11, 6, v10
    v_bfe_u32 v11, v1, 3, 1
    v_lshl_add_u32 v10, v11, 9, v10
    v_and_b32 v11, 3, v1
    v_lshl_add_u32 v10, v11, 3, v10
    v_add_u32 v10, {PL}, v10
    s_lshr_b32 s46, s51, 2
    s_lshl_b32 s46, s46, 3
    s_lshr_b32 s47, s50, 1
    s_add_u32 s46, s46, s47
    s_lshl_b32 s46, s46, 3
    s_and_b32 s47, s51, 3
    s_lshl_b32 s47, s47, 1
    s_add_u32 s46, s46, s47          ; .. *8 + c
    s_lshl_b32 s46, s46, 1
    s_and_b32 s47, s50, 1
    s_add_u32 s46, s46, s47          ; .. *2 + (ks&1)
    s_lshl_b32 s46, s46, 10
    s_add_u32 s46, s46, {WS_WOF}
    s_waitcnt lgkmcnt(0)
    ds_read_b64_tr_b16 v[112:113], v10
    ds_read_b64_tr_b16 v[114:115], v10 offset:128
    ds_read_b64_tr_b16 v[116:117], v10 offset:32
    ds_read_b64_tr_b16 v[118:119], v10 offset:160
    s_waitcnt lgkmcnt(0)
    buffer_store_dwordx4 v[112:115], v8, s[20:23], s46 offen
    buffer_store_dwordx4 v[116:119], v8, s[20:23], s46 offen offset:2048
    s_endpgm
    """)
    return [("qkv1_kernel", 128, 128), ("qkv2_kernel", 128, 128)]
```

```python
import struct, math
WS_Q   = 0x000000
WS_KV  = 0x200000
WS_WOF = 0x240000
WS_QKV_END = 0x2C0000
WS_X1  = 0x300000
WS_XN  = 0x500000
WS_H   = 0x700000
WS_X2  = 0xD00000
WS_END = 0xF00000
def f2hex(x):
    return "0x%08x" % struct.unpack("<I", struct.pack("<f", x))[0]
QSCALE_HEX = f2hex(0.25 * math.log2(math.e))

class VM:
    def __init__(self, cap=63): self.ops = []; self.cap = cap
    def issue(self, tag): self.ops.append(tag)
    def wait(self, tag):
        idx = max(i for i, t in enumerate(self.ops) if t == tag)
        n = len(self.ops) - 1 - idx
        return min(n, self.cap)
```

```python
import sys
from asmlib import *
from layout import *
from k_qkv import gen_qkv, QKV_LDS
from k_attn import gen_attn, ATTN_LDS
from k_gu import gen_gu, GU_LDS
from k_down import gen_down, DOWN_LDS

HDR = open("interleave_layers__grouped_kv_mqa__glu_gated_geglu__prompt.s.ref").read().split("; Override")[0]
def main(out):
    a = Asm()
    import os
    a.stamps_on = bool(os.environ.get('STAMPS'))
    if os.environ.get('STAMPS') == '2': a.stamp_op = 's_memtime'
    launches = [("qkv1_kernel", QKV_LDS), ("attn1_kernel", ATTN_LDS), ("gu_kernel", GU_LDS), ("down1_kernel", DOWN_LDS),
                ("qkv2_kernel", QKV_LDS), ("attn2_kernel", ATTN_LDS), ("gu_kernel", GU_LDS), ("down2_kernel", DOWN_LDS)]
    if os.environ.get('DUP'):
        launches = [launches[0], launches[0], launches[1], launches[1], launches[2], launches[2], launches[3], launches[3]]
    s = HDR
    for k, lds in launches:
        s += f"; @launch kernel={k} grid=(256,1,1) block=(256,1,1) lds={lds}\n"
    s += '.amdgcn_target "amdgcn-amd-amdhsa--gfx950"\n.text\n'
    ks = []
    a.raw('.p2align 8')
    a.label('code_begin')
    ks += gen_qkv(a)
    ks += gen_attn(a)
    ks += gen_gu(a)
    ks += gen_down(a)
    a.label('code_end')
    s += a.text()
    s += '.section .rodata,"a"\n'
    for k, v, acc in ks:
        s += ".p2align 6\n" + kd(k, v, accum=acc)
    open(out, "w").write(s)
main(sys.argv[1] if len(sys.argv) > 1 else "interleave_layers__grouped_kv_mqa__glu_gated_geglu__prompt.s")
```

```python
class Asm:
    def __init__(self):
        self.lines = []
        self._lab = 0
    def __call__(self, s):
        for l in s.split("\n"):
            l = l.strip()
            if l:
                self.lines.append("    " + l)
    def label(self, name):
        self.lines.append(name + ":")
    def raw(self, s):
        self.lines.append(s)
    def comment(self, s):
        self.lines.append("    ; " + s)
    def newlabel(self, p="L"):
        self._lab += 1
        return f"{p}_{self._lab}"
    stamps_on = False
    stamp_op = 's_memrealtime'
    def stamp(self, i):
        if self.stamps_on:
            self(f"{self.stamp_op} s[{64+2*i}:{65+2*i}]")
    def stamp_flush(self, kidx, n, wave_sgpr="s37", ws_srd=20):
        if not self.stamps_on:
            return
        self.stamp(n - 1)
        self("s_waitcnt lgkmcnt(0)")
        self("s_mov_b64 exec, 1")
        self(f"s_lshl_b32 s62, s2, 2")
        self(f"s_add_u32 s62, s62, {wave_sgpr}")
        self(f"s_lshl_b32 s62, s62, 6")
        self(f"s_add_u32 s62, s62, {0x1000000 + kidx * 0x20000}")
        self(f"s_mov_b32 s{ws_srd+2}, 0x2000000")
        self("v_mov_b32 v1, 0")
        for i in range(n):
            self(f"v_mov_b32 v0, s{64+2*i}")
            self(f"buffer_store_dword v0, v1, s[{ws_srd}:{ws_srd+3}], s62 offen offset:{4*i}")
    def text(self):
        return "\n".join(self.lines) + "\n"

def vr(b, n=1):
    return f"v{b}" if n == 1 else f"v[{b}:{b+n-1}]"
def ar(b, n=1):
    return f"a{b}" if n == 1 else f"a[{b}:{b+n-1}]"
def sr(b, n=1):
    return f"s{b}" if n == 1 else f"s[{b}:{b+n-1}]"

def srd(a, d, base, size, off=0):
    if off:
        a(f"s_add_u32 s{d}, s{base}, {off:#x}")
        a(f"s_addc_u32 s{d+1}, s{base+1}, 0")
    else:
        a(f"s_mov_b32 s{d}, s{base}")
        a(f"s_mov_b32 s{d+1}, s{base+1}")
    a(f"s_mov_b32 s{d+2}, {size:#x}")
    a(f"s_mov_b32 s{d+3}, 0x00020000")

def kd(name, vgpr, sgpr=96, accum=None):
    if accum is None:
        accum = (vgpr + 3) // 4 * 4
    return f""".amdhsa_kernel {name}
  .amdhsa_next_free_vgpr {vgpr}
  .amdhsa_next_free_sgpr {sgpr}
  .amdhsa_accum_offset {accum}
  .amdhsa_group_segment_fixed_size 0
  .amdhsa_kernarg_size 96
  .amdhsa_user_sgpr_count 2
  .amdhsa_user_sgpr_kernarg_segment_ptr 1
  .amdhsa_system_sgpr_workgroup_id_x 1
.end_amdhsa_kernel
"""

def code_pf(a, q, voff, vdst, wave="s37", tmp=None):
    lab = a.newlabel("pc")
    t = tmp
    a(f"s_getpc_b64 s[{q}:{q+1}]")
    a.label(lab)
    a(f"s_sub_u32 s{q}, s{q}, {lab}-code_begin")
    a(f"s_subb_u32 s{q+1}, s{q+1}, 0")
    a(f"s_mov_b32 s{q+2}, code_end-code_begin")
    a(f"s_mov_b32 s{q+3}, 0x00020000")
    a(f"s_lshr_b32 s{t}, s2, 3")
    a(f"s_lshl_b32 s{t}, s{t}, 2")
    a(f"s_add_u32 s{t}, s{t}, {wave}")
    a(f"s_lshl_b32 s{t}, s{t}, 13")
    a(f"buffer_load_dword v{vdst}, v{voff}, s[{q}:{q+3}], s{t} offen")
```

```python
from asmlib import *
from layout import *
import math

GU_LDS = 163840
STG = 40960
K1 = -2.0 * math.sqrt(2.0 / math.pi) * math.log2(math.e)
K2 = K1 * 0.044715

def gen_gu(a):
    a.raw(".p2align 8")
    a.raw(".globl gu_kernel")
    a.raw(".type gu_kernel,@function")
    a.label("gu_kernel")
    a.stamp(0)
    a("""
    s_cmp_ge_u32 s2, 256
    s_cbranch_scc1 gu_exit
    s_load_dwordx4 s[24:27], s[0:1], 48
    s_load_dwordx2 s[32:33], s[0:1], 88
    s_load_dwordx2 s[28:29], s[0:1], 64
    s_and_b32 s34, s2, 7
    s_lshr_b32 s35, s2, 3
    s_lshr_b32 s36, s35, 4
    s_lshl_b32 s34, s34, 1
    s_add_u32 s34, s34, s36
    s_and_b32 s35, s35, 15           ; cbk
    s_cmp_eq_u32 s35, 15
    s_cbranch_scc1 gu_exit
    v_lshrrev_b32 v2, 6, v0
    v_and_b32 v1, 63, v0
    v_readfirstlane_b32 s37, v2
    s_add_u32 s38, s34, s35
    s_and_b32 s38, s38, 7
    """)
    a("""
    v_lshrrev_b32 v3, 2, v1
    v_mul_u32_u24 v3, 2752, v3
    s_mul_i32 s39, s35, 192
    v_add_u32 v3, s39, v3
    v_and_b32 v5, 3, v1
    v_xor_b32 v6, 2, v5
    v_lshl_add_u32 v4, v6, 4, v3
    v_lshl_add_u32 v3, v5, 4, v3
    v_lshlrev_b32 v6, 4, v1
    """)
    a(f"""
    s_lshl_b32 s40, s34, 2
    s_add_u32 s40, s40, s37
    s_lshl_b32 s40, s40, 15
    s_add_u32 s40, s40, {WS_XN}
    s_lshl_b32 s41, s37, 12
    s_mul_i32 s42, s37, {16*2752}
    s_lshl_b32 s43, s37, 10
    """)
    a("""
    s_and_b32 s44, s37, 1
    s_lshl_b32 s44, s44, 13
    v_add_u32 v8, s44, v6            ; X base
    v_bfe_u32 v9, v1, 4, 1           ; isup
    v_mul_u32_u24 v10, 12288, v9
    v_lshrrev_b32 v11, 5, v1
    v_lshl_add_u32 v10, v11, 9, v10
    v_bfe_u32 v11, v1, 2, 2
    v_lshl_add_u32 v10, v11, 6, v10
    v_lshl_add_u32 v10, v5, 3, v10
    v_add_u32 v10, 16384, v10
    v_lshl_add_u32 v11, v9, 5, v10   ; u01=0 base
    v_xor_b32 v9, 1, v9
    v_lshl_add_u32 v10, v9, 5, v10   ; u01=1 base
    s_lshr_b32 s54, s37, 1
    s_lshl_b32 s45, s54, 13
    s_cmp_eq_u32 s54, 0
    s_cselect_b64 vcc, -1, 0
    v_cndmask_b32 v9, v10, v11, vcc
    """)
    a("s_lshl_b32 s45, s54, 13")
    for slot in range(4):
        b = 12 + 4 * slot
        a(f"""
        v_add_u32 v{b}, {slot*STG}, v8
        s_add_u32 s47, s45, {slot*STG}
        v_add_u32 v{b+1}, s47, v11
        v_add_u32 v{b+2}, s47, v10
        v_add_u32 v{b+3}, {slot*STG + 4096}, v9
        """)
    a("s_waitcnt lgkmcnt(0)")
    srd(a, 20, 32, WS_END)
    srd(a, 8, 24, 512 * 2752)
    srd(a, 12, 26, 512 * 2752)
    vm = VM()
    def dma(st):
        slot = st & 3
        g = []
        g.append([f"s_add_u32 s44, s38, {st}", "s_and_b32 s44, s44, 7", f"s_add_u32 m0, s41, {slot*STG}", "s_lshl_b32 s45, s44, 12", "s_add_u32 s45, s45, s40",
                  "buffer_load_dwordx4 v6, s[20:23], s45 offen lds"])
        g.append([f"s_mul_i32 s46, s44, {64*2752}", "buffer_load_dwordx4 v6, s[20:23], s45 offen offset:1024 lds"])
        g.append(["s_add_u32 s46, s46, s42", "buffer_load_dwordx4 v6, s[20:23], s45 offen offset:2048 lds"])
        g.append(["buffer_load_dwordx4 v6, s[20:23], s45 offen offset:3072 lds"])
        for p in range(3):
            for mat in range(2):
                g.append([f"s_add_u32 m0, s43, {slot*STG + 16384 + mat*12288 + p*4096}", f"s_add_u32 s47, s46, {64*p}",
                          f"buffer_load_dwordx4 v{3+mat}, s[{8+4*mat}:{11+4*mat}], s47 offen lds"])
        return [(x, f"st{st}") for x in g]
    def emit(grp):
        x, tag = grp
        for l in x: a(l)
        vm.issue(tag)
    for st in range(2):
        for g in dma(st): emit(g)
    ACC = 80
    FR = 32
    def reads(k):
        st, ks = k >> 2, k & 3
        b = 12 + 4 * (st & 3)
        f = FR + 20 * (k & 1)
        r = []
        r.append(f"ds_read_b128 {vr(f,4)}, v{b} offset:{ks*1024}")
        for B in range(2):
            r.append(f"ds_read_b64_tr_b16 {vr(f+8+2*B,2)}, v{b+1} offset:{ks*1024 + B*256}")
        r.append(f"ds_read_b128 {vr(f+4,4)}, v{b} offset:{4096 + ks*1024}")
        for i in range(1, 3):
            for B in range(2):
                r.append(f"ds_read_b64_tr_b16 {vr(f+8+4*i+2*B,2)}, v{b+1+i} offset:{ks*1024 + B*256}")
        return r
    def stage_sync(st):
        a(f"s_waitcnt vmcnt({vm.wait(f'st{st}')})")
        a("s_barrier")
    a.stamp(1)
    stage_sync(0)
    a.stamp(2)
    for x in reads(0): a(x)
    dq = []
    for k in range(32):
        st, ks = k >> 2, k & 3
        f = FR + 20 * (k & 1)
        a("s_waitcnt lgkmcnt(0)")
        if ks == 0 and st + 2 < 8:
            dq = dma(st + 2)
        if ks == 0 and st == 6:
            dq = [(["s_mov_b32 s56, s28", "s_mov_b32 s57, s29", f"s_mov_b32 s58, {1376*1024}", "s_mov_b32 s59, 0x00020000", "v_lshlrev_b32 v7, 7, v1",
                    "s_lshr_b32 s44, s2, 3", "s_lshr_b32 s45, s2, 7", "s_sub_u32 s44, s44, s45", "s_mul_i32 s44, s44, 6", "s_add_u32 s44, s44, s37",
                    "s_lshl_b32 s44, s44, 13", "buffer_load_dword v10, v7, s[56:59], s44 offen"], "pf"),
                  (["s_add_u32 s45, s44, 0x8000", "buffer_load_dword v11, v7, s[56:59], s45 offen"], "pf")]
        if ks == 2 and st == 6:
            code_pf(a, 80, 7, 10, tmp=84); vm.issue("pf")
        pend = reads(k + 1) if k + 1 < 32 else []
        n = 0
        for i in range(3):
            for tt in range(2):
                d = ACC + 16 * (2 * i + tt)
                a(f"v_mfma_f32_32x32x16_bf16 {vr(d,16)}, {vr(f+8+4*i,4)}, {vr(f+4*tt,4)}, {vr(d,16) if k else 0}")
                if n == 0 and ks == 3 and k + 1 < 32:
                    assert not dq
                    stage_sync(st + 1)
                    if st in (1, 3, 5): a.stamp(3 + st // 2)
                cnt = 2 if n < 4 else 0
                for _ in range(cnt):
                    if pend: a(pend.pop(0))
                if n >= 2 and dq and ks < 3:
                    emit(dq.pop(0))
                n += 1
        assert not pend
    a("s_nop 7")
    a.stamp(6)
    a(f"""
    v_mov_b32 v2, {f2hex(K1)}
    v_mov_b32 v3, {f2hex(K1)}
    v_mov_b32 v4, {f2hex(K2)}
    v_mov_b32 v5, {f2hex(K2)}
    v_mov_b32 v8, 1.0
    v_mov_b32 v9, 1.0
    s_mul_i32 s45, s35, 6
    s_lshl_b32 s46, s54, 2
    s_add_u32 s50, s45, s46
    s_add_u32 s51, s50, 1
    s_add_u32 s52, s45, s54
    s_add_u32 s52, s52, 2
    s_lshl_b32 s46, s34, 2
    s_and_b32 s47, s37, 1
    s_lshl_b32 s47, s47, 1
    s_add_u32 s46, s46, s47
    s_mul_i32 s46, s46, {86*1024}
    s_add_u32 s46, s46, {WS_H}
    """)
    for i in range(3):
        skip = a.newlabel("gu_skip")
        a(f"s_cmp_ge_u32 s{50+i}, 86")
        a(f"s_cbranch_scc1 {skip}")
        a(f"s_lshl_b32 s47, s{50+i}, 10")
        a(f"s_add_u32 s47, s47, s46")
        a(f"s_add_u32 s53, s47, {86*1024}")
        for tt in range(2):
            d = ACC + 16 * (2 * i + tt)
            T = 32 + 8 * tt
            P = lambda x: vr(x, 2)
            for r in range(0, 8, 2):
                a(f"v_pk_mul_f32 {P(T+r)}, {P(d+r)}, {P(d+r)}")
            for r in range(0, 8, 2):
                a(f"v_pk_fma_f32 {P(T+r)}, {P(T+r)}, v[4:5], v[2:3]")
            for r in range(0, 8, 2):
                a(f"v_pk_mul_f32 {P(T+r)}, {P(T+r)}, {P(d+r)}")
            for r in range(8):
                a(f"v_exp_f32 v{T+r}, v{T+r}")
            for r in range(0, 8, 2):
                a(f"v_pk_mul_f32 {P(d+r)}, {P(d+r)}, {P(d+8+r)}")
            for r in range(0, 8, 2):
                a(f"v_pk_add_f32 {P(T+r)}, {P(T+r)}, v[8:9]")
            for r in range(8):
                a(f"v_rcp_f32 v{T+r}, v{T+r}")
            a("s_nop 0")
            for r in range(0, 8, 2):
                a(f"v_pk_mul_f32 {P(d+r)}, {P(d+r)}, {P(T+r)}")
            for p in range(4):
                a(f"v_cvt_pk_bf16_f32 v{d+p}, v{d+2*p}, v{d+2*p+1}")
            a(f"buffer_store_dwordx4 {vr(d,4)}, v6, s[20:23], {'s47' if tt == 0 else 's53'} offen")
        a.label(skip)
    if a.stamps_on:
        a("s_waitcnt vmcnt(0)")
        a.stamp_flush(2, 8)
    a.label("gu_exit")
    a("s_endpgm")
    return [("gu_kernel", 176, 176)]
```

```python
class Asm:
    def __init__(self):
        self.lines = []
        self._lab = 0
    def __call__(self, s):
        for l in s.split("\n"):
            l = l.strip()
            if l:
                self.lines.append("    " + l)
    def label(self, name):
        self.lines.append(name + ":")
    def raw(self, s):
        self.lines.append(s)
    def comment(self, s):
        self.lines.append("    ; " + s)
    def newlabel(self, p="L"):
        self._lab += 1
        return f"{p}_{self._lab}"
    stamps_on = False
    stamp_op = 's_memrealtime'
    stamp_sel = None
    def stamp(self, name):
        name = str(name)
        if self.stamps_on and name in self.stamp_sel:
            i = self.stamp_sel.index(name)
            self(f"{self.stamp_op} s[{70+2*i}:{71+2*i}]")
    def stamp_flush(self):
        if not self.stamps_on:
            return
        self("s_waitcnt lgkmcnt(0)")
        self("s_mov_b64 exec, 1")
        self("s_lshl_b32 s62, s2, 2")
        self("s_add_u32 s62, s62, s6")
        self("s_lshl_b32 s62, s62, 6")
        self("s_lshl_b32 s63, s3, 17")
        self("s_add_u32 s62, s62, s63")
        self("s_add_u32 s62, s62, 0x3000000")
        self("s_mov_b32 s18, 0x4000000")
        self("v_mov_b32 v3, 0")
        for i in range(16):
            self(f"v_mov_b32 v2, s{70+2*i}")
            self(f"buffer_store_dword v2, v3, s[16:19], s62 offen offset:{4*i}")
        self("s_mov_b64 exec, -1")
    def text(self):
        return "\n".join(self.lines) + "\n"

def vr(b, n=1):
    return f"v{b}" if n == 1 else f"v[{b}:{b+n-1}]"
def ar(b, n=1):
    return f"a{b}" if n == 1 else f"a[{b}:{b+n-1}]"
def sr(b, n=1):
    return f"s{b}" if n == 1 else f"s[{b}:{b+n-1}]"

def srd(a, d, base, size, off=0):
    if off:
        a(f"s_add_u32 s{d}, s{base}, {off:#x}")
        a(f"s_addc_u32 s{d+1}, s{base+1}, 0")
    else:
        a(f"s_mov_b32 s{d}, s{base}")
        a(f"s_mov_b32 s{d+1}, s{base+1}")
    a(f"s_mov_b32 s{d+2}, {size:#x}")
    a(f"s_mov_b32 s{d+3}, 0x00020000")

def kd(name, vgpr, sgpr=96, accum=None):
    if accum is None:
        accum = (vgpr + 3) // 4 * 4
    return f""".amdhsa_kernel {name}
  .amdhsa_next_free_vgpr {vgpr}
  .amdhsa_next_free_sgpr {sgpr}
  .amdhsa_accum_offset {accum}
  .amdhsa_group_segment_fixed_size 0
  .amdhsa_kernarg_size 96
  .amdhsa_user_sgpr_count 2
  .amdhsa_user_sgpr_kernarg_segment_ptr 1
  .amdhsa_system_sgpr_workgroup_id_x 1
.end_amdhsa_kernel
"""

def code_pf(a, q, voff, vdst, wave="s6", tmp=None):
    lab = a.newlabel("pc")
    t = tmp
    a(f"s_getpc_b64 s[{q}:{q+1}]")
    a.label(lab)
    a(f"s_sub_u32 s{q}, s{q}, {lab}-code_begin")
    a(f"s_subb_u32 s{q+1}, s{q+1}, 0")
    a(f"s_mov_b32 s{q+2}, code_end-code_begin")
    a(f"s_mov_b32 s{q+3}, 0x00020000")
    a(f"s_lshr_b32 s{t}, s2, 3")
    a(f"s_lshl_b32 s{t}, s{t}, 2")
    a(f"s_add_u32 s{t}, s{t}, {wave}")
    a(f"s_lshl_b32 s{t}, s{t}, 13")
    a(f"buffer_load_dword v{vdst}, v{voff}, s[{q}:{q+3}], s{t} offen")
```

```python
import struct, math
LSTRIDE = 0x1000000
WS_Q   = 0x000000
WS_KV  = 0x200000
WS_X1  = 0x300000
WS_XN  = 0x500000
WS_H   = 0x700000
WS_LEND = 0xD00000
WS_X2  = 0xD00000
WS_WOF = 0xF00000
WS_CNT = 0xF80000
WS_WGF = 0x1D00000
WS_WDF = 0x2000000
WS_0END = 0x2200000
WS_STAMP = 0x3000000
OOB = 0x7f000000
CP = 96
CQ, CX, CH, CD = 0, 16, 32, 96
def f2hex(x):
    return "0x%08x" % struct.unpack("<I", struct.pack("<f", x))[0]
QSCALE_HEX = f2hex(0.25 * math.log2(math.e))

class VM:
    def __init__(self, cap=63): self.ops = []; self.cap = cap
    def issue(self, tag): self.ops.append(tag)
    def wait(self, tag):
        idx = max(i for i, t in enumerate(self.ops) if t == tag)
        n = len(self.ops) - 1 - idx
        return min(n, self.cap)

sL, sXG, sJ, sW, sCNT = 3, 4, 5, 6, 7
XIN, WSL, WS0, XOUT, WQ, WKV, WG, WU, WD, WO = 8, 12, 16, 20, 24, 28, 32, 36, 40, 44
def S(q): return f"s[{q}:{q+3}]"
```

```python
from asmlib import *
from layout import *
from sync import *

TS = 2080
OL = 64 * TS
OSTR = 1088
SPARE = OL + 8 * OSTR
YL = 114688
YSTR = 2064
LDS_ALL = 163840
STAGES = [4, 4, 8, 8, 8, 8, 8, 8, 8]

TOK, W256, KVG, KVL, SO, WOB, SO2, W2K, PF0, PF1, T0, T1, T2, T3 = range(48, 62)
WV, KA, VA0, VA1, IDX, PF, CPA, PF16 = 108, 105, 106, 107, 104, 109, 120, 121
Srg = [40, 56]
O = [72, 88]
Q = [8, 12]

class ATT:
    def __init__(self, a):
        self.a = a
        self.vm = VM()
        self.stage_of = []
        for si, n in enumerate(STAGES): self.stage_of += [si] * n
        self.stage_start = {}
        for t, si in enumerate(self.stage_of): self.stage_start.setdefault(si, t)
    def kv_setup(self, i):
        return [f"s_add_u32 s{SO}, s{KVG}, {i*8192}", f"s_and_b32 s{SO}, s{SO}, 0x1ffff", f"s_add_u32 s{SO}, s{SO}, {WS_KV}", f"s_add_u32 m0, s{KVL}, {4*i*TS}"]
    def kv_ops(self, i):
        tag = f"kv{self.stage_of[4*i]}"
        return [(f"buffer_load_dwordx4 v{WV}, {S(WSL)}, s{SO} offen lds", tag),
                (f"buffer_load_dwordx4 v{WV}, {S(WSL)}, s{SO} offen offset:1024 lds", tag)]
    def kv_now(self, i):
        a = self.a
        st = self.kv_setup(i)
        a(st[3]); a(st[0]); a(st[1]); a(st[2])
        for op, tag in self.kv_ops(i):
            a(op); self.vm.issue(tag)

    def pre(self):
        a = self.a
        a(f"""
        s_lshl_b32 s{T0}, s{sXG}, 5
        s_add_u32 s{T0}, s{T0}, s{sJ}
        s_lshl_b32 s{TOK}, s{T0}, 3
        s_lshl_b32 s{W256}, s{sW}, 8
        v_lshlrev_b32 v{WV}, 4, v1
        v_and_b32 v3, 7, v1
        v_lshlrev_b32 v3, 4, v3
        v_bfe_u32 v4, v1, 3, 2
        v_lshl_add_u32 v3, v4, 8, v3
        v_lshrrev_b32 v4, 5, v1
        v_lshl_add_u32 v3, v4, 7, v3
        s_lshl_b32 s{T0}, s{T0}, 13
        s_lshl_b32 s{W2K}, s{sW}, 11
        s_add_u32 s{T0}, s{T0}, s{W2K}
        v_add_u32 v3, s{T0}, v3
        s_lshr_b32 s{KVG}, s{TOK}, 7
        s_lshl_b32 s{KVG}, s{KVG}, 13
        s_add_u32 s{KVG}, s{KVG}, s{W2K}     ; (4*blk + w)*2048
        s_mul_i32 s{KVL}, s{sW}, {TS}
        v_mov_b32 v{IDX}, 0xdddddddd
        v_mov_b32 v{KA}, v{WV}
        v_and_b32 v2, 15, v1
        v_lshlrev_b32 v{VA0}, 4, v2
        v_lshrrev_b32 v2, 5, v1
        v_lshl_add_u32 v{VA0}, v2, 8, v{VA0}
        v_add_u32 v{VA0}, 1024, v{VA0}
        v_add_u32 v{VA1}, 512, v{VA0}
        v_and_b32 v2, 27, v1
        v_cmp_eq_u32 vcc, 16, v2
        v_mov_b32 v2, 2064
        v_mov_b32 v4, 2048
        v_and_b32 v5, 16, v1
        v_cndmask_b32 v2, v2, v4, vcc
        v_cmp_eq_u32 vcc, 0, v5
        v_mov_b32 v40, 0x3f803f80
        v_mov_b32 v41, 0x3f803f80
        v_cndmask_b32 v{VA0}, v2, v{VA0}, vcc
        v_cndmask_b32 v{VA1}, v2, v{VA1}, vcc
        v_mov_b32 v42, 0
        v_lshrrev_b32 v4, 2, v0
        v_mul_u32_u24 v4, {TS}, v4
        v_and_b32 v5, 3, v0
        v_lshl_add_u32 v4, v5, 3, v4
        v_cmp_gt_u32 vcc, 2, v5
        s_nop 1
        v_cndmask_b32 v40, v42, v40, vcc
        v_cndmask_b32 v41, v42, v41, vcc
        ds_write_b64 v4, v[40:41] offset:2048
        v_lshrrev_b32 v4, 5, v0
        v_add_u32 v4, s{TOK}, v4
        v_and_b32 v5, 31, v0
        v_lshlrev_b32 v7, 10, v4
        v_lshl_add_u32 v7, v5, 4, v7
        v_lshlrev_b32 v{PF}, 7, v1
        s_lshl_b32 s{WOB}, s{sW}, 17
        s_add_u32 s{WOB}, s{WOB}, {WS_WOF}
        s_mul_i32 s{PF0}, s{sJ}, {3*32768}
        s_add_u32 s{PF0}, s{PF0}, s{W2K}
        s_add_u32 s{PF0}, s{PF0}, {WS_WGF}
        v_cmp_gt_u32 vcc, 16, v1
        v_mov_b32 v2, {OOB}
        s_nop 0
        v_cndmask_b32 v{PF16}, v2, v{PF}, vcc
        v_and_b32 v{CPA}, 15, v1
        v_lshlrev_b32 v{CPA}, 8, v{CPA}
        """)
        for r in range(72, 104):
            a(f"v_mov_b32 v{r}, 0")

    def main(self):
        a, vm = self.a, self.vm
        stage_of, stage_start = self.stage_of, self.stage_start
        a(f"buffer_load_dwordx4 v[8:11], v3, {S(WSL)}, 0 offen offset:{WS_Q}");  vm.issue("q")
        a(f"buffer_load_dwordx4 v[12:15], v3, {S(WSL)}, 0 offen offset:{WS_Q + 1024}"); vm.issue("q")
        self.kv_now(0)
        sk = a.newlabel("att_np")
        a(f"s_cmp_lg_u32 s{sW}, 0")
        a(f"s_cbranch_scc1 {sk}")
        cnt_addr(a, T0, CQ)
        poll(a, T0, 16, 16, 2, 4, T1)
        a.label(sk)
        def kfrag(t): return 16 + 4 * (t & 1)
        def vfrag(t, i): return 24 + 8 * (t & 1) + 4 * i
        SEG = 31
        def toff(t): return (t % SEG) * TS
        def rdK(t): return f"ds_read_b128 {vr(kfrag(t),4)}, v{KA} offset:{toff(t)}"
        def rdV(t, i): return f"ds_read_b128 {vr(vfrag(t,i),4)}, v{VA0+i} offset:{toff(t)}"
        def qk(i):
            t, u = i >> 1, i & 1
            a(f"v_mfma_f32_32x32x16_bf16 {vr(Srg[i&1],16)}, {vr(kfrag(t),4)}, {vr(Q[u],4)}, 0")
        def smf(i, half):
            t, u = i >> 1, i & 1
            a(f"v_smfmac_f32_32x32x32_bf16 {vr(O[u],16)}, {vr(vfrag(t,half),4)}, {vr(Srg[i&1]+8*half,8)}, v{IDX}")
        NT = 64
        NPRO = 2
        pairs = {0: (self.kv_setup(2), self.kv_ops(2)), 1: (self.kv_setup(3), self.kv_ops(3))}
        for i in range(4, 16):
            pairs[4 * (i - 4) + 2] = (self.kv_setup(i), self.kv_ops(i))
        def ldsfrag_addr(p):
            if p < 2: return SPARE + p * 8192
            return (p - 2) * 8192
        def ldsfrag_earliest(p):
            if p < 2: return 0
            need = (p - 1) * 8192
            for si in sorted(stage_start):
                T = stage_start[si]
                if T * TS >= need: return T
            raise ValueError
        assert SPARE + 2 * 8192 <= LDS_ALL
        t = 7
        for p in range(16):
            t = max(t, ldsfrag_earliest(p))
            while t in pairs: t += 1
            assert t < NT - 1, (p, t)
            pairs[t] = ([f"s_add_u32 s{SO}, s{WOB}, {(96 + 2*p)*1024}", f"s_add_u32 m0, s{W2K}, {ldsfrag_addr(p)}"],
                        [(f"buffer_load_dwordx4 v{WV}, {S(WS0)}, s{SO} offen lds", "wo"),
                         (f"buffer_load_dwordx4 v{WV}, {S(WS0)}, s{SO} offen offset:1024 lds", "wo")])
            t += 3 if t < 50 else 1
        singles = []
        def fragreg(f):
            return ar(4 * f, 4) if f < 64 else vr(128 + 4 * (f - 64), 4)
        for f in range(96):
            setup = f"s_add_u32 s{SO2}, s{WOB}, {f*1024}" if f % 4 == 0 else None
            singles.append((setup, f"buffer_load_dwordx4 {fragreg(f)}, v{WV}, {S(WS0)}, s{SO2} offen offset:{(f%4)*1024}", "wo"))
        for c in range(2):
            singles.append((None, f"buffer_load_dwordx4 {vr(112+4*c,4)}, v7, {S(XIN)}, 0 offen offset:{512*c}", "wo"))
        fixed = {}
        for n in range(8):
            fixed[n] = (None, f"buffer_store_dwordx4 {vr(128+4*n,4)}, v{WV}, {S(WS0)}, s{62+n} offen sc1", "pp")
        fixed[21] = (f"s_mov_b32 s{T0}, {WS_CNT + CP*256}", f"buffer_load_dword v111, v{CPA}, {S(WS0)}, s{T0} offen sc1", "cp")
        for m in range(12):
            fixed[25 + 3 * m] = (f"s_add_u32 s{T0}, s{PF0}, {m*0x2000}", f"buffer_load_dword v110, v{PF16}, {S(WS0)}, s{T0} offen", "pf")
        sq = list(singles)
        cur = [0]
        def emit_single(slotF=False):
            t = cur[0]
            if slotF and t in fixed:
                setup, op, tag = fixed.pop(t)
            else:
                if t < 4 or not sq: return
                if (len(singles) - len(sq)) > (t - 3) * len(singles) / 56.0: return
                setup, op, tag = sq.pop(0)
            if setup: a(setup)
            a(op); vm.issue(tag)

        a(f"s_waitcnt vmcnt(0) lgkmcnt(0)")
        a("s_barrier")
        a.stamp(5)
        a(rdK(0)); a(rdV(0, 0)); a(rdV(0, 1))
        self.kv_now(1)
        a(f"""
        s_lshl_b32 s{T0}, s{sJ}, 14
        s_and_b32 s{T1}, s{sW}, 1
        s_lshl_b32 s{T1}, s{T1}, 13
        s_add_u32 s{T0}, s{T0}, s{T1}
        s_add_u32 s{T0}, s{T0}, {WS_WOF}
        buffer_load_dword v110, v{PF}, {S(WS0)}, s{T0} offen
        """)
        vm.issue("pf0")
        a("s_waitcnt lgkmcnt(0)")
        qk(0)
        a("s_nop 11")
        for i in range(2 * NT):
            t, u = i >> 1, i & 1
            sb = Srg[i & 1]
            nxt = t + 1 < NT
            pr = pairs.get(t)
            cur[0] = t
            for e in range(16):
                a(f"v_exp_f32 v{sb+e}, v{sb+e}")
                if e == 0 and u == 0 and nxt and (t + 1) % SEG == 0:
                    for r in (KA, VA0, VA1):
                        a(f"v_add_u32 v{r}, {SEG*TS}, v{r}")
                if e == 1:
                    if i > 0: smf(i - 1, 1)
                    if u == 0:
                        if nxt and stage_start[stage_of[t + 1]] == t + 1:
                            n_w = vm.wait(f'kv{stage_of[t+1]}')
                            if t + 1 == 16: n_w = min(n_w, vm.wait('pp'))
                            if t + 1 == 24: n_w = min(n_w, vm.wait('cp'))
                            a(f"s_waitcnt vmcnt({n_w})")
                            if t + 1 == 24:
                                cpok = a.newlabel("att_cpok")
                                a(f"v_cmp_gt_u32 vcc, 16, v111")
                                a(f"s_cbranch_vccz {cpok}")
                                a(f"s_mov_b32 s{T0}, {WS_CNT + CP*256}")
                                poll(a, T0, 16, 16, 110, 111, T1)
                                a.label(cpok)
                            a("s_barrier")
                            if t + 1 == 16:
                                sk2 = a.newlabel("att_cp")
                                a(f"s_cmp_lg_u32 s{sW}, 0")
                                a(f"s_cbranch_scc1 {sk2}")
                                a(f"s_lshr_b32 s{T0}, s{TOK}, 7")
                                a(f"s_lshl_b32 s{T0}, s{T0}, 8")
                                a(f"s_add_u32 s{T0}, s{T0}, {WS_CNT + CP*256}")
                                atomic_inc(a, T0, 110)
                                a.label(sk2)
                        elif pr:
                            a(pr[0][0])
                        if nxt: a(rdK(t + 1))
                    else:
                        if nxt: a("s_waitcnt lgkmcnt(2)")
                        if pr:
                            a(pr[1][0][0]); vm.issue(pr[1][0][1])
                        else:
                            emit_single()
                if e == 4:
                    if i + 1 < 2 * NT: qk(i + 1)
                    if u == 0:
                        if nxt: a(rdV(t + 1, 0))
                    else:
                        if pr:
                            a(pr[1][1][0]); vm.issue(pr[1][1][1])
                        else:
                            emit_single()
                if e == 9:
                    smf(i, 0)
                    if u == 0:
                        if pr:
                            done = 0 if (nxt and stage_start[stage_of[t + 1]] == t + 1) else 1
                            for x in pr[0][done:]: a(x)
                        if nxt: a(rdV(t + 1, 1))
                    else:
                        if nxt: a("s_waitcnt lgkmcnt(0)")
                        emit_single(True)
        assert not sq and not fixed, (len(sq), len(fixed))
        a("s_nop 1")
        smf(2 * NT - 1, 1)
        a.stamp(6)
        a(f"""
        v_mov_b32 v2, {f2hex(2.0**-24)}
        v_mov_b32 v3, {f2hex(2.0**40)}
        v_mov_b32 v5, {f2hex(2.0**120)}
        v_cmp_ge_f32 s[58:59], v{O[0]+8}, v2
        v_cmp_le_f32 s[60:61], v{O[0]+8}, v3
        v_max3_f32 v4, |v{O[0]}|, |v{O[0]+1}|, |v{O[0]+2}|
        v_max3_f32 v4, v4, |v{O[0]+3}|, |v{O[0]+4}|
        v_max3_f32 v4, v4, |v{O[0]+5}|, |v{O[0]+6}|
        s_nop 0
        s_and_b64 s[58:59], s[58:59], s[60:61]
        s_nop 2
        v_cmp_ge_f32 s[62:63], v{O[1]+8}, v2
        v_cmp_le_f32 s[60:61], v{O[1]+8}, v3
        v_max3_f32 v4, v4, |v{O[0]+7}|, |v{O[1]}|
        v_max3_f32 v4, v4, |v{O[1]+1}|, |v{O[1]+2}|
        v_max3_f32 v4, v4, |v{O[1]+3}|, |v{O[1]+4}|
        v_max3_f32 v4, v4, |v{O[1]+5}|, |v{O[1]+6}|
        v_max_f32 v4, v4, |v{O[1]+7}|
        v_cmp_le_f32 vcc, v4, v5
        s_and_b64 s[58:59], s[58:59], s[62:63]
        s_and_b64 s[58:59], s[58:59], s[60:61]
        s_and_b64 s[58:59], s[58:59], vcc
        s_cmp_eq_u64 s[58:59], -1
        s_cbranch_scc0 attn_fallback
        """)
        a.label("attn_norm")
        a(f"""
        v_rcp_f32 v2, v{O[0]+8}
        v_rcp_f32 v3, v{O[1]+8}
        v_and_b32 v4, 7, v1
        v_mul_u32_u24 v6, {OSTR}, v4
        v_bfe_u32 v5, v1, 3, 2
        v_lshl_add_u32 v4, v5, 5, v6
        v_lshrrev_b32 v5, 5, v1
        v_lshl_add_u32 v4, v5, 3, v4
        v_add_u32 v4, s{W256}, v4
        v_add_u32 v4, {OL}, v4
        """)
        for u in range(2):
            for r in range(8):
                a(f"v_mul_f32 v{O[u]+r}, v{2+u}, v{O[u]+r}")
            for p in range(4):
                a(f"v_cvt_pk_bf16_f32 v{O[u]+p}, v{O[u]+2*p}, v{O[u]+2*p+1}")
            a(f"ds_write_b64 v4, {vr(O[u],2)} offset:{128*u}")
            a(f"ds_write_b64 v4, {vr(O[u]+2,2)} offset:{128*u+16}")
        ACC = 40
        a(f"""
        v_lshrrev_b32 v5, 4, v1          ; g
        v_lshl_add_u32 v6, v5, 5, v6
        v_bfe_u32 v2, v1, 3, 1
        v_lshl_add_u32 v6, v2, 4, v6
        v_add_u32 v6, {OL}, v6
        v_cmp_eq_u32 vcc, 0, v2
        v_mov_b32 v3, 0xeeee
        v_mov_b32 v4, 0x4444
        v_add_u32 v104, s{W2K}, v{WV}
        v_cndmask_b32 v107, v3, v4, vcc
        v_add_u32 v105, 0x10000, v104
        v_add_u32 v106, {SPARE}, v104
        """)
        for r in range(ACC, ACC + 32):
            a(f"v_mov_b32 v{r}, 0")
        a(f"s_waitcnt vmcnt({vm.wait('wo')}) lgkmcnt(0)")
        a("s_barrier")
        def ldsfrag_read(f, dst):
            p = (f - 96) >> 1
            ad = ldsfrag_addr(p) + ((f - 96) & 1) * 1024
            if ad >= SPARE: base, off = 106, ad - SPARE
            elif ad >= 65536: base, off = 105, ad - 65536
            else: base, off = 104, ad
            return f"ds_read_b128 {vr(dst,4)}, v{base} offset:{off}"
        lg = VM(15)
        order = [4, 5, 0, 1, 2, 3, 6, 7]
        OFR = 72
        for i in order:
            a(f"ds_read_b128 {vr(OFR+4*i,4)}, v6 offset:{128*i}"); lg.issue(f"o{i}")
        pend = []
        for n, i in enumerate(order):
            if i == 5: pend += [(ldsfrag_read(96 + k, 128 + 4 * k), "o6") for k in range(16)]
            if i == 0: pend += [(ldsfrag_read(112 + k, 192 + 4 * k), "o7") for k in range(16)]
            a(f"s_waitcnt lgkmcnt({lg.wait(f'o{i}')})")
            for c in range(8):
                f = (i * 8 + c) * 2
                if f < 64: src = ar(4 * f, 8)
                elif f < 96: src = vr(128 + 4 * (f - 64), 8)
                else: src = vr(128 + 4 * (f - 96), 8)
                a(f"v_smfmac_f32_16x16x64_bf16 {vr(ACC+4*c,4)}, {vr(OFR+4*i,4)}, {src}, v107")
                if pend:
                    x, tag = pend.pop(0); a(x); lg.issue(tag)
        assert not pend
        a(f"""
        v_and_b32 v2, 1, v5
        v_mul_u32_u24 v2, {4*YSTR}, v2
        v_and_b32 v3, 15, v1
        v_lshl_add_u32 v2, v3, 2, v2
        v_lshrrev_b32 v3, 5, v1
        v_lshl_add_u32 v2, v3, 6, v2
        s_lshl_b32 s{T0}, s{sW}, 9
        s_add_u32 s{T0}, s{T0}, {YL}
        v_add_u32 v2, s{T0}, v2
        v_lshrrev_b32 v3, 5, v0
        v_mul_u32_u24 v3, {YSTR}, v3
        v_and_b32 v4, 31, v0
        v_lshl_add_u32 v3, v4, 5, v3
        v_add_u32 v3, {YL}, v3
        """)
        for cp in range(4):
            b = ACC + 8 * cp
            for r in range(4):
                a(f"v_permlane32_swap_b32 v{b+r}, v{b+4+r}")
            a("s_nop 0")
            for r in range(4):
                a(f"v_add_f32 v{b+r}, v{b+r}, v{b+4+r}")
            for r in range(4):
                a(f"ds_write_b32 v2, v{b+r} offset:{r*YSTR + cp*128}")
        for p in range(8):
            a(f"v_lshlrev_b32 v{72+2*p}, 16, v{112+p}")
            a(f"v_and_b32 v{73+2*p}, 0xffff0000, v{112+p}")
        a(f"""
        v_mov_b32 v14, 0x3f803f80
        v_mov_b32 v8, 0
        v_mov_b32 v9, 0
        v_lshrrev_b32 v5, 5, v0
        v_xor_b32 v5, v5, v4
        v_and_b32 v5, 7, v5
        v_lshlrev_b32 v5, 4, v5
        v_lshl_add_u32 v5, v4, 7, v5
        v_add_u32 v5, {OL}, v5
        v_lshrrev_b32 v6, 3, v0
        v_xor_b32 v15, v6, v0
        v_and_b32 v15, 7, v15
        v_lshlrev_b32 v6, 9, v6
        v_lshl_add_u32 v6, v15, 4, v6
        v_lshlrev_b32 v15, 4, v0
        v_add_u32 v15, {OL}, v15
        s_lshr_b32 s{T1}, s{TOK}, 5
        s_lshl_b32 s{T1}, s{T1}, 15
        s_and_b32 s{T2}, s{TOK}, 31
        s_lshl_b32 s{T2}, s{T2}, 4
        s_add_u32 s{T1}, s{T1}, s{T2}
        s_add_u32 s{T1}, s{T1}, {WS_XN}
        s_add_u32 s{T2}, s{T1}, 16384
        s_mov_b32 s{T0}, {WS_X1}
        s_waitcnt lgkmcnt(0)
        s_barrier
        ds_read_b128 v[40:43], v3
        ds_read_b128 v[44:47], v3 offset:16
        ds_read_b128 v[48:51], v3 offset:1024
        ds_read_b128 v[52:55], v3 offset:1040
        """)
        P = lambda x: vr(x, 2)
        for half in range(2):
            a(f"s_waitcnt lgkmcnt({2 - 2*half})")
            for r in range(0, 8, 2):
                a(f"v_pk_add_f32 {P(40+8*half+r)}, {P(40+8*half+r)}, {P(72+8*half+r)}")
            for p in range(4):
                a(f"v_cvt_pk_bf16_f32 v{112+4*half+p}, v{40+8*half+2*p}, v{41+8*half+2*p}")
            for p in range(4):
                a(f"v_dot2c_f32_bf16 v8, v{112+4*half+p}, v14")
                a(f"v_dot2c_f32_bf16 v9, v{112+4*half+p}, v{112+4*half+p}")
            a(f"buffer_store_dwordx4 {vr(112+4*half,4)}, v7, {S(WSL)}, s{T0} offen offset:{512*half} sc1")
        for p in range(8):
            a(f"v_lshlrev_b32 v{72+2*p}, 16, v{112+p}")
            a(f"v_and_b32 v{73+2*p}, 0xffff0000, v{112+p}")
        for sh in (8, 4, 2, 1):
            a(f"v_add_f32_dpp v8, v8, v8 row_ror:{sh} row_mask:0xf bank_mask:0xf")
            a(f"v_add_f32_dpp v9, v9, v9 row_ror:{sh} row_mask:0xf bank_mask:0xf")
            a("s_nop 0")
        a(f"""
        v_mov_b32 v10, v8
        v_mov_b32 v11, v9
        s_nop 1
        v_permlane16_swap_b32 v8, v10
        v_permlane16_swap_b32 v9, v11
        s_nop 0
        v_add_f32 v8, v8, v10
        v_add_f32 v9, v9, v11
        v_mul_f32 v8, 0x3b000000, v8
        v_mul_f32 v9, 0x3b000000, v9
        v_fma_f32 v9, -v8, v8, v9
        v_max_f32 v9, 0, v9
        v_add_f32 v9, 0x3727c5ac, v9
        v_rsq_f32 v10, v9
        s_nop 0
        v_mul_f32 v12, v8, v10
        v_sub_f32 v12, 0, v12            ; -mean*rstd
        """)
        for half in range(2):
            for r in range(0, 8, 2):
                a(f"v_pk_fma_f32 {P(72+8*half+r)}, {P(72+8*half+r)}, v[10:11], v[12:13] op_sel_hi:[1,0,0]")
            for p in range(4):
                a(f"v_cvt_pk_bf16_f32 v{40+4*half+p}, v{72+8*half+2*p}, v{73+8*half+2*p}")
            a(f"ds_write_b128 v5, {vr(40+4*half,4)} offset:{4096*half}")
        a(f"""
        s_waitcnt lgkmcnt(0)
        s_barrier
        ds_read_b128 v[48:51], v15
        ds_read_b128 v[52:55], v15 offset:4096
        s_waitcnt lgkmcnt(1)
        buffer_store_dwordx4 v[48:51], v6, {S(WSL)}, s{T1} offen sc1
        s_waitcnt lgkmcnt(0)
        buffer_store_dwordx4 v[52:55], v6, {S(WSL)}, s{T2} offen sc1
        """)
        a.stamp(7)

    def fallback(self):
        a = self.a
        a.label("attn_fallback")
        CM = 56
        a(f"""
        s_mov_b32 s60, 0x0000ffff
        s_mov_b32 s61, 0x0000ffff
        v_and_b32 v2, 15, v1
        v_lshlrev_b32 v4, 4, v2
        v_lshrrev_b32 v2, 5, v1
        v_lshl_add_u32 v4, v2, 8, v4
        v_and_b32 v2, 27, v1
        v_cmp_eq_u32 vcc, 16, v2
        v_mov_b32 v2, 0x3f803f80
        s_nop 1
        v_cndmask_b32 v24, 0, v2, vcc
        """)
        for r in range(25, 32):
            a(f"v_mov_b32 v{r}, v24")
        for u in range(2):
            l1, l2 = a.newlabel("attn_fb"), a.newlabel("attn_fb")
            a(f"""
            v_mov_b32 v2, 0xff7fffff
            s_mov_b32 s58, {WS_KV}
            """)
            a.label(l1)
            a(f"""
            buffer_load_dwordx4 v[16:19], v{WV}, {S(WSL)}, s58 offen
            s_waitcnt vmcnt(0)
            v_mfma_f32_32x32x16_bf16 v[40:55], v[16:19], {vr(Q[u],4)}, 0
            s_nop 15
            """)
            for e in range(0, 16, 2):
                a(f"v_max3_f32 v2, v2, v{40+e}, v{41+e}")
            a(f"""
            s_add_u32 s58, s58, 2048
            s_cmp_lt_u32 s58, {WS_KV + 131072}
            s_cbranch_scc1 {l1}
            v_mov_b32 v3, v2
            s_nop 1
            v_permlane32_swap_b32 v2, v3
            s_nop 1
            v_max_f32 v2, v2, v3
            v_sub_f32 v2, 0, v2
            """)
            for r in range(16):
                a(f"v_mov_b32 v{CM+r}, v2")
                a(f"v_mov_b32 v{O[u]+r}, 0")
            a(f"s_mov_b32 s58, {WS_KV}")
            a.label(l2)
            a(f"""
            buffer_load_dwordx4 v[16:19], v{WV}, {S(WSL)}, s58 offen
            s_mov_b64 exec, s[60:61]
            buffer_load_dwordx4 v[24:27], v4, {S(WSL)}, s58 offen offset:1024
            buffer_load_dwordx4 v[28:31], v4, {S(WSL)}, s58 offen offset:1536
            s_mov_b64 exec, -1
            s_waitcnt vmcnt(0)
            v_mfma_f32_32x32x16_bf16 v[40:55], v[16:19], {vr(Q[u],4)}, {vr(CM,16)}
            s_nop 15
            """)
            for e in range(16):
                a(f"v_exp_f32 v{40+e}, v{40+e}")
            a(f"""
            s_nop 1
            v_smfmac_f32_32x32x32_bf16 {vr(O[u],16)}, v[24:27], v[40:47], v{IDX}
            v_smfmac_f32_32x32x32_bf16 {vr(O[u],16)}, v[28:31], v[48:55], v{IDX}
            s_add_u32 s58, s58, 2048
            s_cmp_lt_u32 s58, {WS_KV + 131072}
            s_cbranch_scc1 {l2}
            s_nop 15
            """)
        a("s_branch attn_norm")
```

```python
from asmlib import *
from layout import *
from sync import *

NS = 22
RSTR = 272
CB128, HB, WB, T0, T1, T2, T3, TILE, HCA = range(60, 69)
ACC = 32
def wreg(i, ct):
    n = 2 * i + ct
    if n < 28: return vr(144 + 4 * n, 4)
    return ar(176 + 4 * (n - 28), 4)
def hreg(ps, i): return ar(88 * ps + 4 * i, 4)

class DOWN:
    def __init__(self, a):
        self.a = a
        self.vm = VM()
    def addr(self):
        a = self.a
        a(f"""
        s_and_b32 s{CB128}, s{sJ}, 7
        s_mul_i32 s{WB}, s{CB128}, {86*2048}
        s_lshl_b32 s{CB128}, s{CB128}, 7
        s_lshl_b32 s{T0}, s{sW}, 11
        s_add_u32 s{WB}, s{WB}, s{T0}
        s_add_u32 s{WB}, s{WB}, {WS_WDF}
        s_lshl_b32 s{TILE}, s{sXG}, 3
        s_lshr_b32 s{T0}, s{sJ}, 3
        s_add_u32 s{TILE}, s{TILE}, s{T0}
        s_mul_i32 s{HB}, s{TILE}, {86*1024}
        s_add_u32 s{HB}, s{HB}, {WS_H}
        s_lshl_b32 s{T0}, s{sW}, 10
        s_add_u32 s{HB}, s{HB}, s{T0}
        """)
        cnt_addr(a, HCA, CH, TILE)
    def w_loads(self):
        g = []
        for i in range(NS):
            g.append(([f"s_add_u32 s{T0}, s{WB}, {i*8192}", f"buffer_load_dwordx4 {wreg(i,0)}, v6, {S(WS0)}, s{T0} offen"], "wd"))
            g.append(([f"buffer_load_dwordx4 {wreg(i,1)}, v6, {S(WS0)}, s{T0} offen offset:1024"], "wd"))
        return g
    def check_load(self):
        self.a("s_mov_b64 exec, 1")
        self.a(f"buffer_load_dword v22, off, {S(WS0)}, s{HCA} sc1")
        self.a("s_mov_b64 exec, -1")
    def emit(self, g):
        for l in g[0]: self.a(l)
        self.vm.issue(g[1])
    def addr2(self):
        a = self.a
        a(f"""
        v_lshrrev_b32 v24, 3, v0
        v_and_b32 v25, 7, v0
        s_lshl_b32 s{T0}, s{TILE}, 5
        v_add_u32 v27, s{T0}, v24
        v_lshlrev_b32 v27, 10, v27
        v_lshl_add_u32 v27, v25, 4, v27
        v_add_u32 v27, s{CB128}, v27
        v_mul_u32_u24 v24, {RSTR}, v24
        v_lshl_add_u32 v24, v25, 5, v24
        v_add_u32 v24, {RL0}, v24
        v_and_b32 v25, 31, v1
        v_mul_u32_u24 v25, {RSTR}, v25
        v_lshrrev_b32 v26, 5, v1
        v_lshl_add_u32 v25, v26, 4, v25
        s_mul_i32 s{T0}, s{sW}, {32*RSTR}
        s_add_u32 s{T0}, s{T0}, {RL0}
        v_add_u32 v25, s{T0}, v25
        """)
    def h_load(self, ps, i):
        return ([f"s_add_u32 s{T1}, s{HB}, {ps*4*86*1024 + i*4096}", f"buffer_load_dwordx4 {hreg(ps,i)}, v6, {S(WSL)}, s{T1} offen"], f"h{ps}_{i}")
    def res_load(self, ps):
        return ([f"s_mov_b32 s{T1}, {WS_X1 + ps*128*1024}", f"buffer_load_dwordx4 {vr(64+4*ps,4)}, v27, {S(WSL)}, s{T1} offen"], f"r{ps}")
    def finalize(self, ps, mid=None):
        a, vm = self.a, self.vm
        d = ACC
        RL = ps * 0
        a("s_nop 7")
        a("s_nop 3")
        for ct in range(2):
            for q in range(4):
                a(f"ds_write_b128 v25, {vr(d+16*ct+4*q,4)} offset:{ct*128 + q*32}")
        x = 64 + 4 * ps
        a(f"s_waitcnt vmcnt({vm.wait(f'r{ps}')})")
        for p in range(4):
            a(f"v_lshlrev_b32 v{72+2*p}, 16, v{x+p}")
            a(f"v_and_b32 v{73+2*p}, 0xffff0000, v{x+p}")
        if mid: mid()
        a("s_waitcnt lgkmcnt(0)")
        a("s_barrier")
        for w in range(4):
            for q in range(2):
                a(f"ds_read_b128 {vr(96+8*w+4*q,4)}, v24 offset:{w*32*RSTR + q*16}")
        return
    def finalize2(self, ps):
        a, vm = self.a, self.vm
        d = 96
        P = lambda x: vr(x, 2)
        a("s_waitcnt lgkmcnt(4)")
        for r in range(0, 8, 2):
            a(f"v_pk_add_f32 {P(72+r)}, {P(72+r)}, {P(d+r)}")
        for r in range(0, 8, 2):
            a(f"v_pk_add_f32 {P(72+r)}, {P(72+r)}, {P(d+8+r)}")
        a("s_waitcnt lgkmcnt(0)")
        for r in range(0, 8, 2):
            a(f"v_pk_add_f32 {P(d+16+r)}, {P(d+16+r)}, {P(d+24+r)}")
        for r in range(0, 8, 2):
            a(f"v_pk_add_f32 {P(72+r)}, {P(72+r)}, {P(d+16+r)}")
        for p in range(4):
            a(f"v_cvt_pk_bf16_f32 v{80+4*ps+p}, v{72+2*p}, v{73+2*p}")
        a(f"s_mov_b32 s{T1}, {ps*128*1024}")
        a(f"buffer_store_dwordx4 {vr(80+4*ps,4)}, v27, {S(XOUT)}, s{T1} offen sc1"); vm.issue(f"o{ps}")
        if ps == 0:
            a(f"v_subrev_u32 v24, {RL0}, v24")
            a(f"v_subrev_u32 v25, {RL0}, v25")

    def mfmas(self, ps, hq, hook=None):
        a, vm = self.a, self.vm
        skip = a.newlabel("down_skip")
        for i in range(NS):
            a(f"s_waitcnt vmcnt({vm.wait(f'h{ps}_{i}')})")
            if hook: hook(i)
            if i + 1 == NS:
                a(f"s_cmp_ge_u32 s{sW}, 2")
                a(f"s_cbranch_scc1 {skip}")
            for ct in range(2):
                d = ACC + 16 * ct
                a(f"v_mfma_f32_32x32x16_bf16 {vr(d,16)}, {wreg(i,ct)}, {hreg(ps,i)}, {vr(d,16) if i else 0}")
                if hq and i + 1 < NS: self.emit(hq.pop(0))
        assert not hq
        a.label(skip)

    def main(self):
        a, vm = self.a, self.vm
        hq = [self.h_load(0, i) for i in range(NS)] + [self.res_load(0), self.res_load(1)]
        hq.append(([f"v_lshlrev_b32 v26, 7, v1", f"s_lshl_b32 s{T1}, s{sJ}, 1", f"s_and_b32 s{T2}, s{sW}, 1", f"s_add_u32 s{T1}, s{T1}, s{T2}",
                    f"s_lshl_b32 s{T1}, s{T1}, 13", f"buffer_load_dword a255, v26, {S(WQ)}, s{T1} offen"], "pf"))
        for _ in range(12): self.emit(hq.pop(0))
        a.stamp(12)
        def hook(i):
            if i == 13:
                sk = a.newlabel("dn_nc")
                a(f"s_add_u32 s{HCA}, s{HCA}, {4*256}")
                a(f"s_cmp_lg_u32 s{sW}, 0")
                a(f"s_cbranch_scc1 {sk}")
                self.check_load()
                a.label(sk)
        self.mfmas(0, hq, hook)
        a.stamp(13)
        def mid():
            sk = a.newlabel("dn_np")
            a(f"s_cmp_lg_u32 s{sW}, 0")
            a(f"s_cbranch_scc1 {sk}")
            a("s_waitcnt vmcnt(0)")
            a(f"v_readfirstlane_b32 s{T2}, v22")
            a(f"s_cmp_ge_u32 s{T2}, 29")
            a(f"s_cbranch_scc1 {sk}")
            poll(a, HCA, 1, 29, 22, 23, T3)
            a.label(sk)
        self.finalize(0, mid)
        hq = [self.h_load(1, i) for i in range(NS)]
        for _ in range(12): self.emit(hq.pop(0))
        self.finalize2(0)
        self.mfmas(1, hq)
        self.finalize(1)
        self.finalize2(1)
        a.stamp(14)
RL0 = 98304
```

```python
from asmlib import *
from layout import *
from sync import *
import math

K1 = -2.0 * math.sqrt(2.0 / math.pi) * math.log2(math.e)
K2 = K1 * 0.044715
XB, HB, T0, T1, T2, T3, HC, CK1, CK2, U0 = range(48, 58)
ACC = [32, 80]
WA = 128
XV = 128
GT = 8

class GU:
    def __init__(self, a):
        self.a = a
        self.vm = VM()
    def w_dma(self, nshare, sshare):
        a = self.a
        a(f"""
        v_lshlrev_b32 v6, 4, v1
        s_mul_i32 s{T0}, s{sJ}, {3*32768}
        s_add_u32 s{T0}, s{T0}, {WS_WGF}
        s_lshl_b32 s{T1}, s{sshare}, 12
        s_add_u32 s{T0}, s{T0}, s{T1}
        """)
        assert 24 % nshare == 0
        steps = sorted(range(0, 24, nshare), key=lambda c: (c % 8, c))
        for c in range(0, 24, nshare):
            a(f"s_add_u32 m0, s{T1}, {c*4096}")
            a(f"s_add_u32 s{T2}, s{T0}, {c*4096}")
            for k in range(4):
                a(f"buffer_load_dwordx4 v6, {S(WS0)}, s{T2} offen offset:{k*1024} lds")
    def addr(self):
        a = self.a
        a(f"""
        v_lshlrev_b32 v6, 4, v1              ; lane*16
        v_add_u32 v2, 0x10000, v6
        s_mul_i32 s{U0}, s{sJ}, 3
        s_lshl_b32 s{T0}, s{sXG}, 3
        s_add_u32 s{T0}, s{T0}, s{sW}
        s_lshl_b32 s{XB}, s{T0}, 15
        s_add_u32 s{XB}, s{XB}, {WS_XN}
        s_mul_i32 s{HB}, s{T0}, {86*1024}
        s_lshl_b32 s{T1}, s{U0}, 10
        s_add_u32 s{HB}, s{HB}, s{T1}
        s_add_u32 s{HB}, s{HB}, {WS_H}
        s_mov_b32 s{CK1}, {f2hex(K1)}
        s_mov_b32 s{CK2}, {f2hex(K2)}
        v_mov_b32 v7, s{CK1}
        v_mov_b32 v{GT+8}, s{CK2}
        v_mov_b32 v{GT+9}, s{CK2}
        v_mov_b32 v{GT+10}, s{CK1}
        v_mov_b32 v{GT+11}, s{CK1}
        v_mov_b32 v{GT+12}, 1.0
        v_mov_b32 v{GT+13}, 1.0
        v_lshlrev_b32 v3, 7, v1
        v_mov_b32 v4, {OOB}
        s_cmp_eq_u32 s{sJ}, 28
        s_cselect_b32 s{T1}, 16, 24
        v_cmp_gt_u32 vcc, s{T1}, v1
        s_nop 1
        v_cndmask_b32 v3, v4, v3, vcc
        """)
        cnt_addr(a, HC, CH, T0)

    def gelu(self, ps, packed):
        out = []
        T = GT
        for i in range(3):
            d = ACC[ps] + 16 * i
            L = []
            if packed:
                P = lambda x: vr(x, 2)
                for r in range(0, 8, 2): L.append(f"v_pk_mul_f32 {P(T+r)}, {P(d+r)}, {P(d+r)}")
                for r in range(0, 8, 2): L.append(f"v_pk_fma_f32 {P(T+r)}, {P(T+r)}, v[{T+8}:{T+9}], v[{T+10}:{T+11}]")
                for r in range(0, 8, 2): L.append(f"v_pk_mul_f32 {P(T+r)}, {P(T+r)}, {P(d+r)}")
                for r in range(8): L.append(f"v_exp_f32 v{T+r}, v{T+r}")
                for r in range(0, 8, 2): L.append(f"v_pk_mul_f32 {P(d+r)}, {P(d+r)}, {P(d+8+r)}")
                for r in range(0, 8, 2): L.append(f"v_pk_add_f32 {P(T+r)}, {P(T+r)}, v[{T+12}:{T+13}]")
                for r in range(8): L.append(f"v_rcp_f32 v{T+r}, v{T+r}")
                L.append("s_nop 0")
                for r in range(0, 8, 2): L.append(f"v_pk_mul_f32 {P(d+r)}, {P(d+r)}, {P(T+r)}")
            else:
                for r in range(8): L.append(f"v_mul_f32 v{T+r}, v{d+r}, v{d+r}")
                for r in range(8): L.append(f"v_fma_f32 v{T+r}, v{T+r}, s{CK2}, v7")
                for r in range(8): L.append(f"v_mul_f32 v{T+r}, v{T+r}, v{d+r}")
                for r in range(8):
                    L.append(f"v_exp_f32 v{T+r}, v{T+r}")
                    L.append(f"v_mul_f32 v{d+r}, v{d+r}, v{d+8+r}")
                for r in range(8): L.append(f"v_add_f32 v{T+r}, 1.0, v{T+r}")
                for r in range(8):
                    L.append(f"v_rcp_f32 v{T+r}, v{T+r}")
                    if r: L.append(f"v_mul_f32 v{d+r-1}, v{d+r-1}, v{T+r-1}")
                L.append(f"v_cvt_pk_bf16_f32 v{d+8}, v{d}, v{d+1}")
                L.append(f"v_mul_f32 v{d+7}, v{d+7}, v{T+7}")
            for p in range(4):
                if packed or p: L.append(f"v_cvt_pk_bf16_f32 v{d+8+p}, v{d+2*p}, v{d+2*p+1}")
            st = [f"s_add_u32 s{T0}, s{HB}, {ps*4*86*1024}"]
            if i == 2:
                st += [f"s_cmp_eq_u32 s{sJ}, 28", f"s_cselect_b32 s{T0}, {OOB}, s{T0}"]
            L.append(("store", st, f"buffer_store_dwordx4 {vr(d+8,4)}, v6, {S(WSL)}, s{T0} offen offset:{i*1024} sc1"))
            out += L
        return out
    def publish(self, ps):
        a = self.a
        a(f"s_add_u32 s{T0}, s{HB}, {ps*4*86*1024}")
        a(f"buffer_load_dword v5, v3, {S(WSL)}, s{T0} offen")
        a(f"s_add_u32 s{T1}, s{HC}, {ps*4*256}")
        atomic_inc(a, T1, 4)

    def main(self, extra_b, extra_a, at_end):
        a, vm = self.a, self.vm
        def xreg(ps, k): return vr(XV + 4 * k, 4) if ps == 0 else ar(4 * k, 4)
        def xload(ps, k):
            pre = [f"s_add_u32 s{T2}, s{XB}, {ps*4*32768 + k*1024}"] if k % 4 == 0 else []
            return (pre + [f"buffer_load_dwordx4 {xreg(ps,k)}, v6, {S(WSL)}, s{T2} offen offset:{(k%4)*1024}"], f"x{ps}_{k}")
        def emit(g):
            for l in g[0]: a(l)
            vm.issue(g[1])
        def wfr(kk, i): return ar(WA + 12 * (kk & 3) + 4 * i, 4)
        def reads(kk):
            k = kk & 31
            return [f"ds_read_b128 {wfr(kk,i)}, v{6 if i < 2 else 2} offset:{(i&1)*32768 + k*1024}" for i in range(3)]
        xq = [xload(0, k) for k in range(32)] + [xload(1, k) for k in range(32)]
        for _ in range(12): emit(xq.pop(0))
        for kk in range(2):
            for x in reads(kk): a(x)
        gl = []
        eb = list(extra_b)
        ea = list(extra_a)
        a.stamp(9)
        PUB = 55
        for kk in range(64):
            ps, k = kk >> 5, kk & 31
            if kk in (8, 16, 32, 48, 60): a.stamp(f'g{kk}')
            if kk == 61: a.stamp('g61')
            if kk == 33: gl = self.gelu(0, False)
            a(f"s_waitcnt vmcnt({vm.wait(f'x{ps}_{k}')}) lgkmcnt({3 if kk < 63 else 0})")
            pend = reads(kk + 2) if kk < 62 else []
            for i in range(3):
                d = ACC[ps] + 16 * i
                a(f"v_mfma_f32_32x32x16_bf16 {vr(d,16)}, {wfr(kk,i)}, {xreg(ps,k)}, {vr(d,16) if k else 0}")
                if pend: a(pend.pop(0))
                if i == 0 and xq: emit(xq.pop(0))
                elif i == 2 and kk < 32 and kk % 3 == 0 and xq: emit(xq.pop(0))
                elif i == 1 and ea and kk % 2 == 1: emit(ea.pop(0))
                elif eb and kk >= 33 and i == 1: emit(eb.pop(0))
                cost = 0
                while gl and cost < 20:
                    g = gl.pop(0)
                    if isinstance(g, tuple):
                        for l in g[1]: a(l)
                        a(g[2]); vm.issue("hA"); cost += 12
                    else:
                        a(g); cost += 8 if ("exp" in g or "rcp" in g) else 4
            if kk == PUB:
                assert not gl
                a(f"s_waitcnt vmcnt({vm.wait('hA')})")
                self.publish(0); vm.issue("at"); vm.issue("at")
        assert not eb and not xq and not ea, (len(eb), len(xq), len(ea))
        at_end()
        a.stamp(10)
    def tail(self):
        a, vm = self.a, self.vm
        a("s_nop 7")
        for g in self.gelu(1, True):
            if isinstance(g, tuple):
                for l in g[1]: a(l)
                a(g[2]); vm.issue("hB")
            else:
                a(g)
```

```python
from asmlib import *
from layout import *
from sync import *

XL = 0
WL = 65536
KL = 131072
PL = 147456
CSX = 149504
KVS = 150016

RB, CB, ROT, TOK, T0, T1, T2, T3, T4, T5, W4K, W16K, KLB, PKS, PCP, PO0, PO1, PFLAG = range(48, 66)
G0, G1, D0, D1 = 66, 67, 68, 69

class QKV:
    def __init__(self, a):
        self.a = a
        self.vm = VM()
    def emit(self, grp):
        x, tag = grp
        for l in x: self.a(l)
        self.vm.issue(tag)
    def head(self, q):
        return [f"s_add_u32 s{T0}, s{ROT}, {q}", f"s_and_b32 s{T0}, s{T0}, 3"]
    def w_loads(self, q):
        g = []
        hd = self.head(q) + [f"s_lshl_b32 s{T1}, s{T0}, 17"]
        for s in range(4):
            B, hh = s >> 1, s & 1
            g.append(hd + [f"s_add_u32 m0, s{W4K}, {WL + q*16384 + B*2048 + hh*1024}", f"s_add_u32 s{T3}, s{T1}, {(16*hh + 4*B)*1024}",
                           f"buffer_load_dwordx4 v7, {S(WQ)}, s{T3} offen lds"])
            hd = []
        g.append([f"s_add_u32 m0, s{KLB}, {q*4096}", f"s_lshl_b32 s{T3}, s{T0}, 12", f"buffer_load_dwordx4 v10, {S(WKV)}, s{T3} offen lds"])
        return [(x, f"c{q}") for x in g]
    def x_loads(self, q):
        g = []
        hd = self.head(q) + [f"s_lshl_b32 s{T2}, s{T0}, 8"]
        for s in range(4):
            g.append(hd + [f"s_add_u32 m0, s{W16K}, {XL + (4*q+s)*1024}", f"s_add_u32 s{T3}, s{T2}, {64*s}",
                           f"buffer_load_dwordx4 v3, {S(XIN)}, s{T3} offen lds"])
            hd = []
        return [(x, f"c{q}") for x in g]

    def pre(self):
        a = self.a
        a(f"""
        s_lshr_b32 s{T0}, s{sJ}, 3
        s_lshl_b32 s{RB}, s{sXG}, 2
        s_add_u32 s{RB}, s{RB}, s{T0}
        s_and_b32 s{CB}, s{sJ}, 7            ; cb
        s_add_u32 s{ROT}, s{RB}, s{CB}
        s_and_b32 s{ROT}, s{ROT}, 3
        v_lshrrev_b32 v5, 4, v1              ; g
        """)
        a(f"""
        v_lshrrev_b32 v8, 5, v1
        v_lshlrev_b32 v8, 3, v8
        v_bfe_u32 v9, v1, 3, 2
        v_add_u32 v8, v8, v9
        v_lshlrev_b32 v7, 10, v8
        v_lshrrev_b32 v9, 1, v1
        v_xor_b32 v9, v9, v5
        v_and_b32 v9, 3, v9
        v_lshl_add_u32 v7, v9, 5, v7
        v_and_b32 v9, 1, v1
        v_lshl_add_u32 v7, v9, 4, v7
        s_lshl_b32 s{T0}, s{CB}, 7
        s_lshl_b32 s{T1}, s{sW}, 15
        s_add_u32 s{T0}, s{T0}, s{T1}
        v_add_u32 v7, s{T0}, v7
        s_lshl_b32 s{W4K}, s{sW}, 12
        s_lshl_b32 s{W16K}, s{sW}, 14
        v_bfe_u32 v8, v1, 3, 2
        v_lshlrev_b32 v8, 3, v8
        v_lshrrev_b32 v11, 5, v1
        v_lshl_add_u32 v8, v11, 2, v8
        v_bfe_u32 v11, v1, 1, 2
        v_add_u32 v8, v8, v11
        v_lshlrev_b32 v10, 5, v8
        v_lshl_add_u32 v10, v9, 4, v10
        s_lshl_b32 s{T0}, s{sW}, 10
        v_add_u32 v10, s{T0}, v10
        s_add_u32 s{KLB}, s{T0}, {KL}
        """)
        for g in self.w_loads(0) + self.w_loads(1): self.emit(g)
        a(f"""
        v_lshrrev_b32 v4, 2, v1
        v_sub_u32 v6, 0, v5
        v_xor_b32 v6, v6, v1
        v_and_b32 v6, 3, v6
        s_lshl_b32 s{TOK}, s{RB}, 6
        s_lshl_b32 s{T0}, s{sW}, 4
        s_add_u32 s{TOK}, s{TOK}, s{T0}
        v_add_u32 v4, s{TOK}, v4
        v_lshlrev_b32 v3, 10, v4
        v_lshl_add_u32 v3, v6, 4, v3
        """)
        a(f"""
        v_and_b32 v4, 15, v1
        v_lshrrev_b32 v8, 2, v4
        v_sub_u32 v8, 0, v8
        v_xor_b32 v8, v8, v5
        v_and_b32 v8, 3, v8
        v_lshlrev_b32 v11, 6, v4
        v_lshl_add_u32 v11, v8, 4, v11
        v_add_u32 v11, s{W16K}, v11
        v_add_u32 v6, s{TOK}, v4         ; token
        v_lshrrev_b32 v8, 5, v1
        v_lshlrev_b32 v8, 10, v8
        v_bfe_u32 v9, v1, 2, 3
        v_lshl_add_u32 v8, v9, 7, v8
        v_and_b32 v9, 3, v1
        v_lshl_add_u32 v8, v9, 3, v8
        v_add_u32 v8, {WL}, v8
        v_bfe_u32 v9, v1, 3, 2           ; rho>>1
        """)
        for j in range(4):
            a(f"""
            s_add_u32 s{T0}, s{sW}, {j}
            s_and_b32 s{T0}, s{T0}, 3
            v_xor_b32 v{12+j}, s{T0}, v9
            v_lshl_add_u32 v{12+j}, v{12+j}, 5, v8
            """)
        a(f"""
        v_lshlrev_b32 v50, 3, v1
        v_add_u32 v50, {KL}, v50
        v_mov_b32 v44, 0x3f803f80
        v_mov_b32 v45, 0x3f803f80
        v_mov_b32 v46, 0x3f803f80
        v_mov_b32 v47, 0x3f803f80
        v_mov_b32 v48, 0
        v_mov_b32 v49, 0
        """)
        a(f"""
        s_cmp_eq_u32 s{sW}, 3
        s_cselect_b32 s{PFLAG}, 1, 0
        s_cmp_eq_u32 s{sL}, 0
        s_cselect_b32 s{PFLAG}, s{PFLAG}, 0
        s_cmp_eq_u32 s{PFLAG}, 0
        s_cselect_b32 s{WO+2}, 0, 0x80000
        v_lshrrev_b32 v51, 2, v1
        v_lshlrev_b32 v51, 10, v51
        v_and_b32 v9, 3, v1
        v_lshl_add_u32 v51, v9, 4, v51
        s_lshr_b32 s{PKS}, s2, 4
        s_and_b32 s{PCP}, s2, 15
        s_lshl_b32 s{PO0}, s{PKS}, 15
        s_lshl_b32 s{PO1}, s{PCP}, 6
        s_add_u32 s{PO0}, s{PO0}, s{PO1}
        s_add_u32 s{PO1}, s{PO0}, 16384
        """)

        a(f"""
        v_lshrrev_b32 v52, 2, v1
        v_mul_u32_u24 v52, 2752, v52
        v_lshl_add_u32 v52, v9, 4, v52
        s_lshl_b32 s{T0}, s2, 2
        s_add_u32 s{T0}, s{T0}, s{sW}
        s_cmp_eq_u32 s{sL}, 0
        s_cselect_b32 s{T0}, s{T0}, 4096
        s_mov_b32 s{G0}, s{T0}
        s_add_u32 s{G1}, s{T0}, 1024
        s_sub_u32 s{D0}, s{T0}, 352
        s_add_u32 s{D1}, s{T0}, 672
        """)
    def prep_loads(self):
        g = []
        for n, (idx, lim) in enumerate(((G0, 1376), (G1, 1376))):
            r = 128 + 8 * n
            hd = [f"s_and_b32 s{T4}, s{idx}, 31", f"s_mul_i32 s{T4}, s{T4}, {16*2752}", f"s_lshr_b32 s{T5}, s{idx}, 5", f"s_lshl_b32 s{T5}, s{T5}, 6",
                  f"s_add_u32 s{T4}, s{T4}, s{T5}", f"s_cmp_lt_u32 s{idx}, {lim}", f"s_cselect_b32 s{T4}, s{T4}, {OOB}"]
            g.append((hd + [f"buffer_load_dwordx4 {vr(r,4)}, v52, {S(WG)}, s{T4} offen"], "pp"))
            g.append(([f"buffer_load_dwordx4 {vr(r+4,4)}, v52, {S(WU)}, s{T4} offen"], "pp"))
        for n, (idx, lim) in enumerate(((D0, 672), (D1, 688))):
            r = 144 + 8 * n
            hd = [f"s_lshr_b32 s{T4}, s{idx}, 3", f"s_lshl_b32 s{T4}, s{T4}, 14", f"s_and_b32 s{T5}, s{idx}, 7", f"s_lshl_b32 s{T5}, s{T5}, 7",
                  f"s_add_u32 s{T4}, s{T4}, s{T5}", f"s_cmp_lt_u32 s{idx}, {lim}", f"s_cselect_b32 s{T4}, s{T4}, {OOB}"]
            g.append((hd + [f"buffer_load_dwordx4 {vr(r,4)}, v51, {S(WD)}, s{T4} offen"], "pp"))
            g.append(([f"buffer_load_dwordx4 {vr(r+4,4)}, v51, {S(WD)}, s{T4} offen offset:64"], "pp"))
        return g
    def prep_process(self):
        a = self.a
        end = a.newlabel("prep_end")
        STG = 141824
        I0 = 52
        for n in range(4): a(f"s_mov_b32 s{I0+n}, s{G0+n}")
        for n in range(8): a(f"s_mov_b32 s{62+n}, {OOB}")
        a(f"""
        s_cmp_lg_u32 s{sL}, 0
        s_cbranch_scc1 {end}
        v_lshlrev_b32 v8, 4, v1
        s_lshl_b32 s56, s{sW}, 11
        s_add_u32 s56, s56, {STG}
        v_add_u32 v9, s56, v8
        v_bfe_u32 v12, v1, 2, 2              ; r'
        v_and_b32 v13, 3, v1
        v_lshlrev_b32 v13, 3, v13
        v_lshl_add_u32 v13, v12, 6, v13
        v_add_u32 v13, s56, v13              ; r'*64 + c'*8
        v_lshrrev_b32 v12, 5, v1
        v_bfe_u32 v14, v1, 4, 1
        v_lshl_add_u32 v10, v12, 9, v13
        v_lshl_add_u32 v10, v14, 10, v10     ; G: (g&1)*1024 + (g>>1)*512
        v_lshl_add_u32 v11, v12, 8, v13
        v_lshl_add_u32 v11, v14, 5, v11      ; D: (g>>1)*256 + (g&1)*32
        """)
        for n, (lim, isG) in enumerate(((1376, 1), (1376, 1), (672, 0), (688, 0))):
            idx = I0 + n
            r = 128 + 8 * n
            d0, d1 = 62 + 2 * n, 63 + 2 * n
            sk = a.newlabel("prep_skip")
            a(f"s_cmp_ge_u32 s{idx}, {lim}")
            a(f"s_cbranch_scc1 {sk}")
            a(f"ds_write_b128 v9, {vr(r,4)}")
            a(f"ds_write_b128 v9, {vr(r+4,4)} offset:1024")
            if isG:
                a(f"""
                s_lshr_b32 s{d0}, s{idx}, 5
                s_lshl_b32 s{d0}, s{d0}, 16
                s_and_b32 s{d1}, s{idx}, 31
                s_lshl_b32 s{d1}, s{d1}, 10
                s_add_u32 s{d0}, s{d0}, s{d1}
                s_add_u32 s{d0}, s{d0}, {WS_WGF}
                s_add_u32 s{d1}, s{d0}, 32768
                """)
                ad, oB, o2 = 10, 256, 32
            else:
                a(f"""
                s_and_b32 s{d0}, s{idx}, 7
                s_mul_i32 s{d0}, s{d0}, {86*2048}
                s_lshr_b32 s{d1}, s{idx}, 3
                s_lshl_b32 s{d1}, s{d1}, 11
                s_add_u32 s{d0}, s{d0}, s{d1}
                s_add_u32 s{d0}, s{d0}, {WS_WDF}
                s_add_u32 s{d1}, s{d0}, 1024
                """)
                ad, oB, o2 = 11, 512, 1024
            a(f"""
            s_waitcnt lgkmcnt(0)
            ds_read_b64_tr_b16 {vr(r,2)}, v{ad}
            ds_read_b64_tr_b16 {vr(r+2,2)}, v{ad} offset:{oB}
            ds_read_b64_tr_b16 {vr(r+4,2)}, v{ad} offset:{o2}
            ds_read_b64_tr_b16 {vr(r+6,2)}, v{ad} offset:{o2+oB}
            s_waitcnt lgkmcnt(0)
            """)
            a.label(sk)
        a.label(end)

    def main(self, after_first):
        a, vm = self.a, self.vm
        for g in self.x_loads(0) + self.x_loads(1): self.emit(g)
        wo_g = [([f"buffer_load_dwordx4 v[112:115], v51, {S(WO)}, s{PO0} offen"], "wo"), ([f"buffer_load_dwordx4 v[116:119], v51, {S(WO)}, s{PO1} offen"], "wo")]
        for g in wo_g + self.prep_loads(): self.emit(g)
        WF = 64
        def reads(s):
            b = WF + (s & 1) * 24
            r = [f"ds_read_b128 {vr(b,4)}, v11 offset:{s*1024}"]
            for j in range(4):
                for B in range(2):
                    r.append(f"ds_read_b64_tr_b16 {vr(b + 4 + j*4 + B*2, 2)}, v{12+j} offset:{s*4096 + B*2048}")
            for B in range(2):
                r.append(f"ds_read_b64_tr_b16 {vr(b + 20 + B*2, 2)}, v50 offset:{s*1024 + B*512}")
            return r
        def sync(q):
            a(f"s_waitcnt vmcnt({vm.wait(f'c{q}')})")
            a("s_barrier")
        sync(0)
        after_first()
        a.stamp(1)
        for x in reads(0): a(x)
        lq = self.w_loads(2) + self.x_loads(2) + self.w_loads(3) + self.x_loads(3)
        for s in range(16):
            b = WF + (s & 1) * 24
            x = b
            a("s_waitcnt lgkmcnt(0)")
            if s % 4 == 3 and s < 15:
                sync(s // 4 + 1)
            pend = reads(s + 1) if s < 15 else []
            C = (lambda r: vr(r, 4)) if s else (lambda r: "0")
            mf = [f"v_mfma_f32_16x16x32_bf16 {vr(16+4*j,4)}, {vr(b+4+4*j,4)}, {vr(x,4)}, {C(16+4*j)}" for j in range(4)]
            mf += [f"v_mfma_f32_16x16x32_bf16 v[32:35], {vr(b+4,4)}, v[44:47], {C(32)}",
                   f"v_mfma_f32_16x16x32_bf16 v[36:39], {vr(b+20,4)}, {vr(x,4)}, {C(36)}",
                   f"v_mfma_f32_16x16x32_bf16 v[40:43], {vr(b+20,4)}, v[44:47], {C(40)}"]
            dots = []
            for c in range(4):
                dots += [f"v_dot2c_f32_bf16 v48, v{x+c}, v44", f"v_dot2c_f32_bf16 v49, v{x+c}, v{x+c}"]
            for n, m in enumerate(mf):
                a(m)
                for _ in range(2):
                    if pend: a(pend.pop(0))
                if n in (1, 3, 5, 6) and lq: self.emit(lq.pop(0))
                if n >= 5 or not pend:
                    for _ in range(4):
                        if dots: a(dots.pop(0))
            for d in dots: a(d)
        assert not lq
        a.stamp(2)
        a(f"""
        s_nop 3
        v_lshlrev_b32 v8, 4, v5
        s_lshl_b32 s{T0}, s{sW}, 6
        v_add_u32 v9, s{T0}, v8
        v_add_u32 v9, {CSX}, v9          ; CSX + w*64 + g*16
        v_mov_b32 v50, v48
        v_mov_b32 v51, v49
        ds_write_b128 v9, v[32:35]
        ds_write_b128 v9, v[32:35] offset:256
        v_permlane32_swap_b32 v48, v50
        v_permlane32_swap_b32 v49, v51
        s_nop 1
        v_add_f32 v48, v48, v50
        v_add_f32 v49, v49, v51
        v_mov_b32 v50, v48
        v_mov_b32 v51, v49
        s_nop 1
        v_permlane16_swap_b32 v48, v50
        v_permlane16_swap_b32 v49, v51
        s_nop 1
        v_add_f32 v48, v48, v50
        v_add_f32 v49, v49, v51
        v_mul_f32 v48, 0x3b000000, v48
        v_mul_f32 v49, 0x3b000000, v49   ; E[x^2]
        v_fma_f32 v49, -v48, v48, v49    ; var
        v_max_f32 v49, 0, v49
        v_add_f32 v49, 0x3727c5ac, v49   ; + 1e-5
        v_rsq_f32 v49, v49               ; rstd
        s_waitcnt lgkmcnt(0)
        s_barrier
        ds_read_b128 v[68:71], v9 offset:64
        ds_read_b128 v[72:75], v9 offset:128
        ds_read_b128 v[76:79], v9 offset:192
        v_mul_f32 v50, {QSCALE_HEX}, v49
        """)
        for r in range(4):
            a(f"v_fma_f32 v{36+r}, -v48, v{40+r}, v{36+r}")
        for r in range(4):
            a(f"v_mul_f32 v{36+r}, v49, v{36+r}")
        a("v_cvt_pk_bf16_f32 v36, v36, v37")
        a("v_cvt_pk_bf16_f32 v37, v38, v39")
        a(f"""
        v_lshrrev_b32 v8, 3, v6
        v_lshlrev_b32 v8, 13, v8
        v_and_b32 v9, 7, v6
        v_lshl_add_u32 v8, v9, 4, v8
        v_lshrrev_b32 v9, 1, v5
        v_lshl_add_u32 v8, v9, 7, v8
        v_and_b32 v9, 1, v5
        v_add_u32 v9, s{sW}, v9
        v_and_b32 v12, 3, v9
        v_lshl_add_u32 v12, v12, 8, v8
        v_add_u32 v9, 2, v9
        v_and_b32 v13, 3, v9
        v_lshl_add_u32 v13, v13, 8, v8
        s_lshl_b32 s{T0}, s{CB}, 10
        """)
        for j in range(4):
            cs = 32 if j == 0 else 64 + 4 * j
            if j == 1: a("s_waitcnt lgkmcnt(0)")
            for r in range(4):
                a(f"v_fma_f32 v{16+4*j+r}, -v48, v{cs+r}, v{16+4*j+r}")
            for r in range(4):
                a(f"v_mul_f32 v{16+4*j+r}, v50, v{16+4*j+r}")
            d = 80 + 2 * j
            a(f"v_cvt_pk_bf16_f32 v{d}, v{16+4*j}, v{17+4*j}")
            a(f"v_cvt_pk_bf16_f32 v{d+1}, v{18+4*j}, v{19+4*j}")
            if j & 1:
                p = 80 + 2 * (j - 1)
                a("s_nop 1")
                a(f"v_permlane16_swap_b32 v{p}, v{p+2}")
                a(f"v_permlane16_swap_b32 v{p+1}, v{p+3}")
                a(f"buffer_store_dwordx4 {vr(p,4)}, v{12 + (j>>1)}, {S(WSL)}, s{T0} offen offset:{WS_Q} sc1")
        kvd, vst, kvs = a.newlabel("qkv_kvdone"), a.newlabel("qkv_v"), a.newlabel("qkv_kvst")
        a(f"""
        s_and_b32 s{T0}, s{CB}, 3
        s_cmp_lg_u32 s{T0}, s{sW}
        s_cbranch_scc1 {kvd}
        s_lshr_b32 s{T1}, s{TOK}, 5
        s_lshl_b32 s{T1}, s{T1}, 11
        s_add_u32 s{T1}, s{T1}, {WS_KV}
        s_and_b32 s{T2}, s{TOK}, 16
        v_and_b32 v9, 31, v1
        v_lshlrev_b32 v9, 4, v9
        v_add_u32 v12, {KVS}, v9
        s_cmp_lt_u32 s{CB}, 4
        s_cbranch_scc0 {vst}
        v_lshrrev_b32 v8, 1, v5
        v_lshlrev_b32 v8, 8, v8
        v_lshl_add_u32 v8, v4, 4, v8
        v_and_b32 v13, 1, v5
        v_lshl_add_u32 v8, v13, 3, v8
        v_add_u32 v8, {KVS}, v8
        ds_write_b64 v8, v[36:37]
        v_bfe_u32 v8, v1, 4, 1
        v_lshl_add_u32 v9, v8, 8, v9
        s_lshl_b32 s{T2}, s{T2}, 4
        s_branch {kvs}
        """)
        a.label(vst)
        a(f"""
        v_lshrrev_b32 v8, 3, v4
        v_lshlrev_b32 v8, 8, v8
        v_lshl_add_u32 v8, v5, 6, v8
        v_and_b32 v13, 7, v4
        v_lshl_add_u32 v8, v13, 1, v8
        v_add_u32 v8, {KVS}, v8
        ds_write_b16 v8, v36
        ds_write_b16_d16_hi v8, v36 offset:16
        ds_write_b16 v8, v37 offset:32
        ds_write_b16_d16_hi v8, v37 offset:48
        s_lshl_b32 s{T2}, s{T2}, 5
        s_add_u32 s{T2}, s{T2}, 1024
        """)
        a.label(kvs)
        a(f"""
        s_add_u32 s{T1}, s{T1}, s{T2}
        s_waitcnt lgkmcnt(0)
        ds_read_b128 v[36:39], v12
        s_waitcnt lgkmcnt(0)
        s_mov_b32 exec_hi, 0
        buffer_store_dwordx4 v[36:39], v9, {S(WSL)}, s{T1} offen sc1
        s_mov_b64 exec, -1
        """)
        a.label(kvd)
        pd = a.newlabel("qkv_pdone")
        a(f"""
        s_cmp_eq_u32 s{PFLAG}, 0
        s_cbranch_scc1 {pd}
        v_lshlrev_b32 v8, 4, v1
        v_add_u32 v9, {PL}, v8
        s_waitcnt vmcnt(2)
        ds_write_b128 v9, v[112:115]
        ds_write_b128 v9, v[116:119] offset:1024
        v_lshrrev_b32 v10, 5, v1         ; row = 16*(g>>1) + 4*(g&1) + 2B + (r'&1) + 8*(r'>>1)
        v_lshlrev_b32 v10, 10, v10
        v_bfe_u32 v11, v1, 4, 1
        v_lshl_add_u32 v10, v11, 8, v10
        v_bfe_u32 v11, v1, 2, 1
        v_lshl_add_u32 v10, v11, 6, v10
        v_bfe_u32 v11, v1, 3, 1
        v_lshl_add_u32 v10, v11, 9, v10
        v_and_b32 v11, 3, v1
        v_lshl_add_u32 v10, v11, 3, v10
        v_add_u32 v10, {PL}, v10
        s_lshr_b32 s{T0}, s{PCP}, 2
        s_lshl_b32 s{T0}, s{T0}, 3
        s_lshr_b32 s{T1}, s{PKS}, 1
        s_add_u32 s{T0}, s{T0}, s{T1}
        s_lshl_b32 s{T0}, s{T0}, 3
        s_and_b32 s{T1}, s{PCP}, 3
        s_lshl_b32 s{T1}, s{T1}, 1
        s_add_u32 s{T0}, s{T0}, s{T1}
        s_lshl_b32 s{T0}, s{T0}, 1
        s_and_b32 s{T1}, s{PKS}, 1
        s_add_u32 s{T0}, s{T0}, s{T1}
        s_lshl_b32 s{T0}, s{T0}, 10
        s_add_u32 s{T0}, s{T0}, {WS_WOF}
        s_waitcnt lgkmcnt(0)
        ds_read_b64_tr_b16 v[112:113], v10
        ds_read_b64_tr_b16 v[114:115], v10 offset:128
        ds_read_b64_tr_b16 v[116:117], v10 offset:32
        ds_read_b64_tr_b16 v[118:119], v10 offset:160
        s_waitcnt lgkmcnt(0)
        buffer_store_dwordx4 v[112:115], v8, {S(WS0)}, s{T0} offen sc1
        buffer_store_dwordx4 v[116:119], v8, {S(WS0)}, s{T0} offen offset:2048 sc1
        """)
        a.label(pd)
```

```python
from asmlib import *
from layout import *

POLL_MAX = 200000

def atomic_inc(a, saddr, vtmp):
    a(f"""
    v_mov_b32 v{vtmp}, 1
    s_mov_b64 exec, 1
    buffer_atomic_add v{vtmp}, off, {S(WS0)}, s{saddr} sc1
    s_mov_b64 exec, -1
    """)

def poll(a, saddr, n, target, vaddr, vtmp, stmp, stride_log2=8, srd=WS0, sleep=2):
    lp, out = a.newlabel("poll"), a.newlabel("pollout")
    a(f"""
    v_lshlrev_b32 v{vaddr}, {stride_log2}, v1
    s_mov_b32 s{stmp}, {POLL_MAX}
    s_mov_b64 exec, {(1 << n) - 1}
    """)
    a.label(lp)
    a(f"""
    buffer_load_dword v{vtmp}, v{vaddr}, {S(srd)}, s{saddr} offen sc1
    s_sub_u32 s{stmp}, s{stmp}, 1
    s_cmp_eq_u32 s{stmp}, 0
    s_cbranch_scc1 {out}
    s_waitcnt vmcnt(0)
    v_cmp_gt_u32 vcc, {target}, v{vtmp}
    s_cbranch_vccz {out}
    s_sleep {sleep}
    s_branch {lp}
    """)
    a.label(out)
    a("s_mov_b64 exec, -1")

def cnt_addr(a, sdst, base, sidx=None, shift=0):
    if sidx is None:
        a(f"s_add_u32 s{sdst}, s{sCNT}, {base*256}")
    else:
        a(f"s_lshl_b32 s{sdst}, s{sidx}, {8+shift}")
        a(f"s_add_u32 s{sdst}, s{sdst}, s{sCNT}")
        if base: a(f"s_add_u32 s{sdst}, s{sdst}, {base*256}")
```

```python
import sys, os
from asmlib import *
from layout import *
from sync import *
import p_qkv, p_attn, p_gu, p_down

NAME = "interleave_layers__grouped_kv_mqa__glu_gated_geglu__prompt"
HDR = open(f"cdna_kernels/{NAME}.s.ref").read().split("; Override")[0]

def wave0(a, fn):
    sk = a.newlabel("w0")
    a(f"s_cmp_lg_u32 s{sW}, 0")
    a(f"s_cbranch_scc1 {sk}")
    fn()
    a.label(sk)

def main(out):
    a = Asm()
    a.stamps_on = bool(os.environ.get('STAMPS'))
    a.stamp_sel = os.environ.get('SEL', '0,1,2,3,4,5,6,7,8,9,10,11,12,13,14,15').split(',')
    if os.environ.get('STAMPS') == '2': a.stamp_op = 's_memtime'
    K = NAME + "_kernel"
    a.raw(f".globl {K}")
    a.raw(".p2align 8")
    a.raw(f".type {K},@function")
    a.label(K)
    a.label("code_begin")
    a(f"""
    s_cmp_ge_u32 s2, 256
    s_cbranch_scc1 k_exit
    s_load_dwordx16 s[48:63], s[0:1], 0
    s_load_dwordx8 s[64:71], s[0:1], 64
    s_mov_b32 s{sL}, 0
    s_and_b32 s{sXG}, s2, 7
    s_lshr_b32 s{sJ}, s2, 3
    v_lshrrev_b32 v2, 6, v0
    v_and_b32 v1, 63, v0
    v_readfirstlane_b32 s{sW}, v2
    s_mov_b32 s{sCNT}, {WS_CNT}
    v_lshlrev_b32 v121, 7, v1
    """)
    code_pf(a, 72, 121, 122, tmp=76)
    a("s_and_b32 s76, s5, 7")
    a("s_waitcnt lgkmcnt(0)")
    srd(a, XIN, 48, 2048 * 1024)
    srd(a, WQ, 50, 512 * 1024)
    a(f"""
    s_cmp_lt_u32 s76, 4
    s_cselect_b32 s{WKV}, s52, s54
    s_cselect_b32 s{WKV+1}, s53, s55
    s_mov_b32 s{WKV+2}, 0x4000
    s_mov_b32 s{WKV+3}, 0x00020000
    """)
    srd(a, WO, 56, 512 * 1024)
    srd(a, WG, 60, 512 * 2752)
    srd(a, WU, 62, 512 * 2752)
    srd(a, WD, 64, 1376 * 1024)
    srd(a, WSL, 70, WS_LEND)
    srd(a, WS0, 70, WS_0END)
    srd(a, XOUT, 70, 2048 * 1024, WS_X2)
    ni = a.newlabel("noinit")
    a(f"""
    s_or_b32 s72, s2, s{sW}
    s_cmp_lg_u32 s72, 0
    s_cbranch_scc1 {ni}
    v_lshlrev_b32 v2, 8, v1
    v_mov_b32 v3, 0
    """)
    for n in range(4):
        a(f"s_add_u32 s72, s{sCNT}, {n*16384}")
        a(f"buffer_store_dword v3, v2, {S(WS0)}, s72 offen sc1")
    a.label(ni)
    a.label("layer_top")
    a.stamp(0)
    q = p_qkv.QKV(a)
    q.pre()
    nw = a.newlabel("nowait")
    a(f"s_cmp_eq_u32 s{sL}, 0")
    a(f"s_cbranch_scc1 {nw}")
    def w():
        cnt_addr(a, p_qkv.T0, CD, p_qkv.RB)
        poll(a, p_qkv.T0, 1, 16, 16, 17, p_qkv.T1)
    wave0(a, w)
    a("s_barrier")
    a.label(nw)
    def raise_flag():
        nf = a.newlabel("noflag")
        a(f"""
        s_or_b32 s{p_qkv.T0}, s2, s{sW}
        s_or_b32 s{p_qkv.T0}, s{p_qkv.T0}, s{sL}
        s_cmp_lg_u32 s{p_qkv.T0}, 0
        s_cbranch_scc1 {nf}
        s_load_dwordx2 s[{WO}:{WO+1}], s[0:1], 80
        s_mov_b32 s{WO+2}, 256
        v_mov_b32 v16, 1
        s_waitcnt lgkmcnt(0)
        s_mov_b64 exec, 1
        buffer_store_dword v16, off, {S(WO)}, 0 sc1
        s_mov_b64 exec, -1
        s_mov_b32 s{WO+2}, 0
        """)
        a.label(nf)
    q.main(raise_flag)
    a.stamp(3)
    a("s_waitcnt vmcnt(0)")
    a("s_barrier")
    def w():
        ok = a.newlabel("initok")
        a(f"s_cmp_lg_u32 s{sL}, 0")
        a(f"s_cbranch_scc1 {ok}")
        a("s_load_dwordx2 s[60:61], s[0:1], 80")
        a("s_mov_b32 s62, 256")
        a("s_mov_b32 s63, 0x00020000")
        a("s_mov_b32 s64, 0")
        a("s_waitcnt lgkmcnt(0)")
        poll(a, 64, 1, 1, 2, 3, 65, srd=60)
        a.label(ok)
        a(f"s_lshr_b32 s64, s{p_qkv.RB}, 1")
        cnt_addr(a, 65, CQ, 64)
        atomic_inc(a, 65, 2)
    wave0(a, w)
    q.prep_process()
    t = p_attn.ATT(a)
    t.pre()
    def w():
        a(f"s_lshr_b32 s58, s{p_attn.TOK}, 7")
        cnt_addr(a, 59, CQ, 58)
        poll(a, 59, 1, 16, 2, 4, 60)
    wave0(a, w)
    a("s_barrier")
    a.stamp(4)
    t.main()
    a("s_waitcnt vmcnt(0)")
    a.stamp("7a")
    a("s_barrier")
    a.stamp("7b")
    def w():
        a(f"s_lshr_b32 s64, s{p_attn.TOK}, 7")
        cnt_addr(a, 66, CX, 64)
        atomic_inc(a, 66, 2)
    wave0(a, w)
    a(f"buffer_load_dword v8, v6, {S(WSL)}, s{p_attn.T1} offen")
    a(f"buffer_load_dword v9, v6, {S(WSL)}, s{p_attn.T2} offen")
    g = p_gu.GU(a)
    d = p_down.DOWN(a)
    a(f"s_cmp_ge_u32 s{sJ}, 29")
    a("s_cbranch_scc1 gu_idle")
    pl, jn = a.newlabel("gu_poll"), a.newlabel("gu_join")
    d.addr()
    def wd_early():
        for x in d.w_loads()[28:]:
            for l in x[0]: a(l)
    a("v_lshlrev_b32 v6, 4, v1")
    a(f"s_cmp_eq_u32 s{sW}, 0")
    a(f"s_cbranch_scc1 {pl}")
    a(f"s_sub_u32 s58, s{sW}, 1")
    g.w_dma(3, 58)
    wd_early()
    a(f"s_branch {jn}")
    a.label(pl)
    wd_early()
    cnt_addr(a, 58, CX, sXG, shift=1)
    poll(a, 58, 2, 16, 10, 11, 59)
    a.label(jn)
    a.stamp("7c")
    g.addr()
    a("s_waitcnt vmcnt(16)")
    a.stamp("7d")
    a("s_barrier")
    a.stamp(8)
    g.main(d.w_loads()[:28], [], lambda: None)
    g.tail()
    a.stamp(11)
    wave0(a, d.check_load)
    d.addr2()
    a("s_waitcnt vmcnt(0)")
    g.publish(1)
    a.stamp("11b")
    a(f"s_cmp_lg_u32 s{sW}, 0")
    a("s_cbranch_scc1 gu_done")
    a("v_readfirstlane_b32 s58, v22")
    a("s_cmp_ge_u32 s58, 29")
    a("s_cbranch_scc1 gu_done")
    poll(a, p_down.HCA, 1, 29, 22, 23, p_down.T3, sleep=2)
    a("s_branch gu_done")
    a.label("gu_idle")
    a("v_lshlrev_b32 v6, 4, v1")
    d.addr()
    for x in d.w_loads():
        for l in x[0]: a(l)
    d.addr2()
    a(f"s_cmp_lg_u32 s{sW}, 0")
    a("s_cbranch_scc1 gu_done")
    poll(a, p_down.HCA, 1, 29, 22, 23, p_down.T3, sleep=16)
    a.label("gu_done")
    a("s_barrier")
    a.stamp("11a")
    d.main()
    a(f"s_cmp_lg_u32 s{sL}, 0")
    a("s_cbranch_scc1 k_done")
    a("s_waitcnt vmcnt(0)")
    a("s_barrier")
    def w():
        a(f"s_lshr_b32 s58, s{p_down.TILE}, 1")
        cnt_addr(a, 59, CD + 128, 58)
        atomic_inc(a, 59, 2)
        a("s_add_u32 s59, s59, 512")
        atomic_inc(a, 59, 2)
    wave0(a, w)
    a(f"s_mov_b32 s58, {128*1024}")
    a(f"buffer_load_dword v123, v27, {S(XOUT)}, 0 offen")
    a(f"buffer_load_dword v123, v27, {S(XOUT)}, s58 offen")
    a.stamp(15)
    a.stamp_flush()
    a(f"""
    s_load_dwordx2 s[48:49], s[0:1], 72
    s_mov_b32 s{sL}, 1
    s_add_u32 s{sCNT}, s{sCNT}, {128*256}
    s_mov_b32 s{XIN}, s{XOUT}
    s_mov_b32 s{XIN+1}, s{XOUT+1}
    s_add_u32 s{WSL}, s{WSL}, {LSTRIDE}
    s_addc_u32 s{WSL+1}, s{WSL+1}, 0
    s_waitcnt lgkmcnt(0)
    s_mov_b32 s{XOUT}, s48
    s_mov_b32 s{XOUT+1}, s49
    s_branch layer_top
    """)
    a.label("k_done")
    if a.stamps_on:
        a("s_waitcnt vmcnt(0)")
        a.stamp(15)
        a.stamp_flush()
    a.label("k_exit")
    a("s_endpgm")
    t.fallback()
    a.label("code_end")
    s = HDR + "; @launch grid=(256,1,1) block=(256,1,1) lds=163840\n"
    s += '.amdgcn_target "amdgcn-amd-amdhsa--gfx950"\n.text\n' + a.text()
    s += '.section .rodata,"a"\n.p2align 6\n' + kd(K, 512, sgpr=102, accum=256)
    open(out, "w").write(s)
main(sys.argv[1] if len(sys.argv) > 1 else f"pk.s")
```

```python
import sys
HEAD = """; @launch grid=({grid},1,1) block=({block},1,1) lds={lds}
.amdgcn_target "amdgcn-amd-amdhsa--gfx950"
.text
.globl mb_kernel
.p2align 8
.type mb_kernel,@function
mb_kernel:
    s_load_dwordx4 s[4:7], s[0:1], 0
    v_lshrrev_b32 v1, 6, v0
    s_nop 0
    v_readfirstlane_b32 s20, v1
    s_waitcnt lgkmcnt(0)
    s_mov_b32 s8, s4
    s_mov_b32 s9, s5
    s_mov_b32 s10, 0x1000000
    s_mov_b32 s11, 0x00020000
    s_mov_b32 s12, s6
    s_mov_b32 s13, s7
    s_mov_b32 s14, 0x4000000
    s_mov_b32 s15, 0x00020000
    v_lshlrev_b32 v2, 4, v0
"""
TAIL = """
    s_memtime s[24:25]
    s_memrealtime s[28:29]
    s_waitcnt lgkmcnt(0)
    s_sub_u32 s24, s24, s22
    s_sub_u32 s28, s28, s26
    s_mul_i32 s30, s2, {wpb}
    s_add_u32 s30, s30, s20
    s_lshl_b32 s30, s30, 4
    v_mov_b32 v4, s24
    v_mov_b32 v5, s28
    v_mov_b32 v6, v{keep}
    v_mov_b32 v7, v{keep2}
    v_mov_b32 v1, s30
    v_cmp_eq_u32 vcc, 0, v3
    s_and_saveexec_b64 s[32:33], vcc
    buffer_store_dwordx4 v[4:7], v1, s[8:11], 0 offen
    s_waitcnt vmcnt(0)
    s_endpgm
.section .rodata,"a"
.p2align 6
.amdhsa_kernel mb_kernel
  .amdhsa_next_free_vgpr {nvgpr}
  .amdhsa_next_free_sgpr 64
  .amdhsa_accum_offset {nvgpr}
  .amdhsa_group_segment_fixed_size 0
  .amdhsa_kernarg_size 16
  .amdhsa_user_sgpr_count 2
  .amdhsa_user_sgpr_kernarg_segment_ptr 1
  .amdhsa_system_sgpr_workgroup_id_x 1
.end_amdhsa_kernel
"""
def gen(name, body, iters, block, nvgpr=128, grid=256, lds=0, init=""):
    s = HEAD.format(grid=grid, block=block, lds=lds)
    s += "    v_and_b32 v3, 63, v0\n"
    for r in range(8, 40, 4):
        s += f"    buffer_load_dwordx4 v[{r}:{r+3}], v2, s[12:15], 0 offen offset:{(r-8)*64}\n"
    s += "    s_waitcnt vmcnt(0)\n"
    for r in range(40, nvgpr):
        s += f"    v_mov_b32 v{r}, 0\n"
    s += init
    s += "    s_barrier\n    s_memtime s[22:23]\n    s_memrealtime s[26:27]\n    s_waitcnt lgkmcnt(0)\n"
    s += f"    s_mov_b32 s21, {iters}\n"
    s += ".p2align 6\nL_loop:\n" + body
    s += "    s_sub_u32 s21, s21, 1\n    s_cmp_lg_u32 s21, 0\n    s_cbranch_scc1 L_loop\n"
    s += "    s_nop 15\n    s_nop 15\n"
    s += TAIL.format(wpb=block // 64, nvgpr=nvgpr, keep=40, keep2=72)
    open(name, "w").write(s)

def exp_only(n):
    return "".join(f"    v_exp_f32 v{40+i%32}, v{8+i%32}\n" for i in range(n))
def cvt_only(n):
    return "".join(f"    v_cvt_pk_bf16_f32 v{40+i%32}, v{8+i%32}, v{8+(i+1)%32}\n" for i in range(n))
def add_only(n):
    return "".join(f"    v_add_f32 v{40+i%32}, v{8+i%32}, v{8+(i+1)%32}\n" for i in range(n))
def expcvt():
    s = ""
    for i in range(8):
        s += f"    v_exp_f32 v{40+2*i}, v{8+2*i}\n    v_exp_f32 v{41+2*i}, v{9+2*i}\n"
        j = (i + 4) % 8
        s += f"    v_cvt_pk_bf16_f32 v{72+j}, v{56+2*j}, v{57+2*j}\n"
    return s
def attn_tile(sa, sb, order="a"):
    s = ""
    s += f"    v_mfma_f32_32x32x16_bf16 v[{sb}:{sb+15}], v[12:15], v[8:11], 0\n"
    for i in range(8):
        s += f"    v_exp_f32 v{sa+2*i}, v{sa+2*i}\n    v_exp_f32 v{sa+1+2*i}, v{sa+1+2*i}\n"
        if i >= 1:
            j = i - 1
            s += f"    v_cvt_pk_bf16_f32 v{72+j}, v{sa+2*j}, v{sa+1+2*j}\n"
        if i == 5:
            s += f"    v_mfma_f32_32x32x16_bf16 v[80:95], v[16:19], v[72:75], v[80:95]\n"
    s += f"    v_cvt_pk_bf16_f32 v{72+7}, v{sa+14}, v{sa+15}\n"
    s += "    s_nop 1\n"
    s += f"    v_mfma_f32_32x32x16_bf16 v[80:95], v[20:23], v[76:79], v[80:95]\n"
    return s

for blk in (256, 512, 1024):
    nv = 128 if blk <= 1024 else 64
    gen(f"mb_exp_{blk}.s", exp_only(64), 200, blk, nv)
    gen(f"mb_cvt_{blk}.s", cvt_only(64), 200, blk, nv)
    gen(f"mb_add_{blk}.s", add_only(64), 200, blk, nv)
    gen(f"mb_expcvt_{blk}.s", expcvt() * 4, 200, blk, nv)
    gen(f"mb_attn_{blk}.s", attn_tile(40, 56) + attn_tile(56, 40), 200, blk, nv)
```

```python
from mb_gen import gen
import glob, os
for f in glob.glob("mb10_*.s"): os.remove(f)
def step(sa, sb, extra):
    s = ""
    for e in range(16):
        s += f"    v_exp_f32 v{sa+e}, v{sa+e}\n"
        if e == 1:
            s += f"    v_smfmac_f32_32x32x32_bf16 v[80:95], v[20:23], v[{sb+8}:{sb+15}], v24\n"
        if e == 4:
            s += f"    v_mfma_f32_32x32x16_bf16 v[{sb}:{sb+15}], v[12:15], v[8:11], 0\n"
        if e == 9:
            s += f"    v_smfmac_f32_32x32x32_bf16 v[80:95], v[16:19], v[{sa}:{sa+7}], v24\n"
        for x in extra.get(e, []):
            s += "    " + x + "\n"
    return s
init = """    v_mov_b32 v24, 0xdddddddd
    v_lshlrev_b32 v100, 4, v3
    s_mov_b32 m0, 0
    s_mov_b32 s50, 0
    s_mov_b32 s52, s6
    s_or_b32 s53, s7, 0x00100000
    s_mov_b32 s54, 0x400000
    s_mov_b32 s55, 0x00800000
    buffer_load_dwordx4 v[116:119], off, s[52:55], s50 offset:1024
    buffer_load_dwordx4 v[120:123], v100, s[12:15], s50 offen offset:1024
    s_waitcnt vmcnt(0)
    v_cmp_ne_u32 vcc, v116, v120
    v_cmp_ne_u32 s[56:57], v119, v123
    s_or_b64 s[56:57], s[56:57], vcc
    s_bcnt1_i32_b64 s56, s[56:57]
    v_mov_b32 v72, s56
"""
rd = lambda r, o: f"ds_read_b128 v[{r}:{r+3}], v100 offset:{o}"
ld = lambda r, o: f"buffer_load_dwordx4 v[{r}:{r+3}], v100, s[12:15], s50 offen offset:{o}"
lt = lambda r, o: f"buffer_load_dwordx4 v[{r}:{r+3}], off, s[52:55], s50 offset:{o}"
ltl = lambda o: f"buffer_load_dwordx4 off, s[52:55], s50 offset:{o} lds"
gl = lambda r, o: f"global_load_dwordx4 v[{r}:{r+3}], v100, s[6:7] offset:{o}"
gll = lambda o: f"global_load_lds_dwordx4 v100, s[6:7] offset:{o}"
W = "s_waitcnt lgkmcnt(0)"
base_a = {1: [rd(104,0), rd(108,1024), rd(112,2048)]}
variants = {
 "base": (base_a, {1: [W]}),
 "b3": (base_a, {1: [W], 9: [ld(116, 0), ld(120, 1024), ld(124, 2048)]}),
 "g1": (base_a, {1: [W], 9: [gl(116, 0)]}),
 "g3": (base_a, {1: [W], 9: [gl(116, 0), gl(120, 1024), gl(124, 2048)]}),
 "g3s": ({1: base_a[1], 9: [gl(116, 0)]}, {1: [W], 4: [gl(120, 1024)], 9: [gl(124, 2048)]}),
 "gl3": (base_a, {1: [W], 9: [gll(0), gll(1024), gll(2048)]}),
 "b3s": ({1: base_a[1], 9: [ld(116, 0)]}, {1: [W], 4: [ld(120, 1024)], 9: [ld(124, 2048)]}),
 "b0": (base_a, {1: [W], 9: ["buffer_load_dwordx4 v[116:119], v100, s[12:15], 0 offen", "buffer_load_dwordx4 v[120:123], v100, s[12:15], 0 offen offset:1024", "buffer_load_dwordx4 v[124:127], v100, s[12:15], 0 offen offset:2048"]}),
}
for name, (xa, xb) in variants.items():
    body = ""
    for t in range(8):
        body += step(40, 56, xa) + step(56, 40, xb)
    gen(f"mb10_{name}.s", body, 50, 256, 128, init=init, lds=65536)
```
